```python
import torch

def _softmax(x, axis=-1):
    return torch.softmax(x, dim=axis)

def _gelu(x):
    return torch.nn.functional.gelu(x, approximate='tanh')

def _silu(x):
    return torch.nn.functional.silu(x)

def _sigmoid(x):
    return torch.sigmoid(x)

def _layernorm(x, axis=-1, eps=1e-05):
    m = x.mean(dim=axis, keepdim=True)
    v = x.var(dim=axis, keepdim=True, unbiased=False)
    return (x - m) / torch.sqrt(v + eps)

def _scatter_add(tgt, idx, src, axis=0):
    return tgt.clone().index_add_(axis, idx, src)

def _segment_sum(src, seg, n):
    out = torch.zeros((n,) + src.shape[1:], dtype=src.dtype)
    return out.index_add_(0, seg, src)

def _pad(x, pw):
    flat = tuple((v for pair in reversed(pw) for v in pair))
    return torch.nn.functional.pad(x, flat)
kernel_name = 'adaLN_cond__ssm_conv_s4d__dense_activation_relu__prompt'

def setup_inputs():

    _w = lambda a: (lambda t: t.to(torch.bfloat16) if t.is_floating_point() else t)(torch.as_tensor(a))

    def _A_setup():
        Bsz, L, D, N = (1, 2048, 512, 128)
        return {'u': _w((lambda *s: torch.randn(*s, dtype=torch.bfloat16) * 0.05)(Bsz, L, D)), 'log_A_real': _w((lambda *s: torch.randn(*s, dtype=torch.bfloat16) * 3.2)(D, N) * 0.5), 'A_imag': _w((lambda *s: torch.randn(*s, dtype=torch.bfloat16) * 0.1)(D, N) * 3.14), 'C_real': _w((lambda *s: torch.randn(*s, dtype=torch.bfloat16) * 0.4)(D, N) / N ** 0.5), 'C_imag': _w((lambda *s: torch.randn(*s, dtype=torch.bfloat16) * 0.4)(D, N) / N ** 0.5), 'log_dt': _w((lambda *s: torch.randn(*s, dtype=torch.bfloat16) * 0.1)(D) * 0.5 - 4.0), 'D_skip': _w((lambda *s: torch.randn(*s, dtype=torch.bfloat16) * 0.1)(D))}
    _A_in = _A_setup()

    def _B_setup():
        B, S, D, Dff = (1, 2048, 512, 1376)
        return {'x': _w((lambda *s: torch.randn(*s, dtype=torch.bfloat16) * 0.05)(B, S, D)), 'w1': _w((lambda *s: torch.randn(*s, dtype=torch.bfloat16) * 0.05)(D, Dff)), 'w2': _w((lambda *s: torch.randn(*s, dtype=torch.bfloat16) * 0.05)(Dff, D))}
    _B_in = _B_setup()
    return {'A_u': _A_in['u'], 'A_log_A_real': _A_in['log_A_real'], 'A_A_imag': _A_in['A_imag'], 'A_C_real': _A_in['C_real'], 'A_C_imag': _A_in['C_imag'], 'A_log_dt': _A_in['log_dt'], 'A_D_skip': _A_in['D_skip'], 'B_x': _B_in['x'], 'B_w1': _B_in['w1'], 'B_w2': _B_in['w2'], 'c': _w((lambda *s: torch.randn(*s, dtype=torch.bfloat16) * 0.2)(1, 512) * 8.0), 'w_mod': _w((lambda *s: torch.randn(*s, dtype=torch.bfloat16) * 0.2)(512, 6 * 512) * 512 ** (-0.5) * 8.0)}

def reference(A_u, A_log_A_real, A_A_imag, A_C_real, A_C_imag, A_log_dt, A_D_skip, B_x, B_w1, B_w2, c, w_mod):

    def _A_ref(u, log_A_real, A_imag, C_real, C_imag, log_dt, D_skip):
        L = u.shape[1]
        dt = torch.exp(log_dt)
        A = -torch.exp(log_A_real) + 1j * A_imag
        C = (C_real + 1j * C_imag) * dt[:, None]
        pos = (lambda x, dt: x.to(dt))(torch.arange(L), log_dt.dtype)
        P = torch.exp((A * dt[:, None])[:, :, None] * pos[None, None, :])
        K = 2.0 * torch.einsum('dn,dnl->dl', C, P).real
        L2 = 2 * L
        u_t = (lambda x, *d: x.permute(*d))(u, 0, 2, 1)
        Kf = (lambda x, *a, **k: torch.fft.rfft(x.float(), *a, **k))(K, L2)
        Uf = (lambda x, *a, **k: torch.fft.rfft(x.float(), *a, **k))(u_t, L2)
        y = (lambda x, *a, **k: torch.fft.irfft(x, *a, **k).to(torch.bfloat16))(Uf * Kf[None, :, :], L2)[:, :, :L]
        y = (lambda x, *d: x.permute(*d))(y, 0, 2, 1)
        return y + u * D_skip[None, None, :]

    def _B_ref(x, w1, w2):
        h = torch.einsum('bsd,df->bsf', x, w1)
        zero = torch.zeros_like(h)
        h = torch.maximum(h, zero)
        return torch.einsum('bsf,fd->bsd', h, w2)
    x = A_u
    mod = (_silu(c) @ w_mod).reshape(c.shape[0], 6, 1, -1)
    sa, ca, ga, sb, cb, gb = (mod[:, 0].clone(), mod[:, 1].clone(), mod[:, 2].clone(), mod[:, 3].clone(), mod[:, 4].clone(), mod[:, 5].clone())
    h = _layernorm(x, axis=-1) * (1 + ca) + sa
    x = x + ga * _A_ref(h, A_log_A_real, A_A_imag, A_C_real, A_C_imag, A_log_dt, A_D_skip)
    h = _layernorm(x, axis=-1) * (1 + cb) + sb
    x = x + gb * _B_ref(h, B_w1, B_w2)
    return x
```

```python
import re
from asmgen import KN, HEADER, file_text

REG = re.compile(r"\b([vas])(\d+)\b|\b([vas])\[(\d+):(\d+)\]|\b(vcc|exec|m0)\b")
TRANS = ("v_exp_", "v_log_", "v_rcp_", "v_rsq_", "v_sqrt_", "v_sin_", "v_cos_")

def regs_of(op):
    out = set()
    for m in REG.finditer(op):
        if m.group(1): out.add((m.group(1), int(m.group(2))))
        elif m.group(3):
            for i in range(int(m.group(4)), int(m.group(5)) + 1): out.add((m.group(3), i))
        else: out.add((m.group(6), 0))
    return out

class Ins:
    def __init__(self, text):
        self.text = text
        t = text.split(";")[0].strip()
        self.label = t.endswith(":")
        self.directive = t.startswith(".")
        p = t.split(None, 1)
        self.mn = p[0] if p else ""
        rest = p[1] if len(p) > 1 else ""
        rest2 = re.sub(r"\b(op_sel|op_sel_hi|neg_lo|neg_hi|quad_perm):\[[^\]]*\]", "", rest)
        self.ops = [o.strip() for o in rest2.split(",")] if rest2.strip() else []
        mn = self.mn
        self.mfma = mn.startswith("v_mfma")
        self.valu = mn.startswith("v_") and not self.mfma
        self.trans = mn.startswith(TRANS)
        self.dot = mn.startswith("v_dot")
        self.dpp = "_dpp" in mn
        self.perml = mn.startswith("v_permlane")
        self.rdlane = mn.startswith(("v_readlane", "v_readfirstlane"))
        self.vmem = mn.startswith(("buffer_", "global_"))
        self.ds = mn.startswith("ds_")
        self.smem = mn.startswith(("s_load", "s_memtime", "s_memrealtime"))
        self.salu = mn.startswith("s_") and not self.smem
        R = [regs_of(o) for o in self.ops]
        d, u = set(), set()
        U = lambda L: set().union(*L) if L else set()
        self.store_data = set(); self.C = set(); self.AB = set()
        if self.label or self.directive or not mn: pass
        elif self.mfma:
            d = R[0]; self.AB = R[1] | R[2]; self.C = R[3]; u = self.AB | self.C
            self.passes = 8 if "32x32" in mn else 4
        elif self.valu:
            if self.perml or mn.startswith("v_swap"): d = R[0] | R[1]; u = set(d)
            elif mn.startswith(("v_add_co", "v_sub_co", "v_addc_co", "v_subb_co")): d = R[0] | R[1]; u = U(R[2:])
            elif mn.startswith("v_cmpx"): raise ValueError("no cmpx")
            else:
                d = R[0]; u = U(R[1:])
                if mn.startswith(("v_fmac", "v_dot2c", "v_writelane")) or self.dpp: u |= R[0]
            if self.dot: self.C = R[3] if len(R) > 3 else R[0]; self.AB = R[1] | R[2]
        elif self.vmem:
            if "load" in mn:
                d = R[0]; u = U(R[1:])
                if "d16" in mn: u |= R[0]
            elif mn.startswith("buffer_store"): u = U(R); self.store_data = R[0]
            elif mn.startswith("global_store"): u = U(R); self.store_data = R[1]
            else: raise ValueError(mn)
        elif self.ds:
            if mn.startswith(("ds_read", "ds_bpermute")): d = R[0]; u = U(R[1:])
            else: u = U(R)
            if "addtid" in mn: u.add(("m0", 0))
        elif self.smem: d = R[0]; u = U(R[1:])
        elif self.salu:
            if mn.startswith(("s_cmp", "s_cbranch", "s_branch", "s_waitcnt", "s_nop", "s_barrier", "s_sleep", "s_endpgm", "s_setprio", "s_bitcmp")): u = U(R)
            else: d = R[0]; u = U(R[1:])
        self.d, self.u = d, u
        self.wide = self.vmem and "store" in mn and mn.endswith(("x3", "x4"))
    def states(self):
        if self.label or self.directive: return 0
        if self.mn == "s_nop": return int(self.ops[0]) + 1
        return 1

isv = lambda s: {r for r in s if r[0] in "va"}
iss = lambda s: {r for r in s if r[0] in ("s", "vcc")}

def need(p, c):
    n = 0
    if p.valu:
        pv = isv(p.d); ps = iss(p.d)
        if c.mfma and pv & c.u: n = max(n, 2)
        if c.dpp and pv & c.u: n = max(n, 2)
        if c.perml and pv & c.u: n = max(n, 2)
        if c.rdlane and pv & c.u: n = max(n, 1)
        if p.trans and (pv & c.u): n = max(n, 1)
        if p.dot and pv & (c.u | c.d):
            if not (c.mn == p.mn and not (pv & c.AB)): n = max(n, 3)
        if ps & c.u:
            if c.vmem: n = max(n, 5)
            elif c.valu: n = max(n, 4 if c.mn.startswith(("v_readlane", "v_writelane")) else 2)
    if p.mfma:
        big = 12 if p.passes == 8 else 8
        if c.mfma:
            if p.d & c.AB: n = max(n, big)
            if p.d & c.C and not (p.d == c.C and p.passes == c.passes): n = max(n, big - 2)
            if p.d & c.d and not (p.d == c.d): n = max(n, big)
        elif (c.valu or c.vmem or c.ds) and p.d & (c.u | c.d): n = max(n, big)
        if c.valu and p.C & c.d: n = max(n, 7 if p.passes == 8 else 3)
    if p.wide and p.store_data & c.d: n = max(n, 2)
    if p.salu and ("m0", 0) in p.d and ("m0", 0) in c.u and (c.ds or c.vmem): n = max(n, 1)
    return n

class Asm:
    def __init__(self):
        self.L = []; self.nlab = 0; self.vq = []; self.lq = []
    def __call__(self, s, tag=None):
        for l in s.strip("\n").split("\n"):
            l = l.strip()
            if not l: continue
            i = Ins(l); self.L.append(i)
            if i.vmem: self.vq.append(tag)
            if i.ds: self.lq.append(tag)
    def label(self, p="L"):
        self.nlab += 1; return f"{p}_{self.nlab}"
    def _cnt(self, q, tag):
        idx = max(i for i, t in enumerate(q) if t == tag)
        return len(q) - 1 - idx
    def wvm(self, tag): self(f"s_waitcnt vmcnt({min(63, self._cnt(self.vq, tag))})")
    def wl(self, tag): self(f"s_waitcnt lgkmcnt({min(15, self._cnt(self.lq, tag))})")
    def finish(self, verbose=True):
        out = []; npad = 0
        vq, lq, sq = [], [], []
        for c in self.L:
            if not (c.label or c.directive):
                dist = 0; req = 0
                for p in reversed(out):
                    if dist >= 12: break
                    if not (p.label or p.directive): req = max(req, need(p, c) - dist)
                    dist += p.states()
                if req > 0:
                    out.append(Ins(f"s_nop {req-1}")); npad += req
                if c.mn == "s_waitcnt":
                    m = re.search(r"vmcnt\((\d+)\)", c.text)
                    if m:
                        n = int(m.group(1)); vq = vq[len(vq) - n:] if n < len(vq) else vq
                        if n == 0: vq = []
                    m = re.search(r"lgkmcnt\((\d+)\)", c.text)
                    if m:
                        n = int(m.group(1)); lq = lq[len(lq) - n:] if n < len(lq) else lq
                        if n == 0: lq = []; sq = []
                elif c.mn in ("s_endpgm", "s_branch"): vq, lq, sq = [], [], []
                else:
                    for q in (vq, lq, sq):
                        for p in q:
                            if p.d & (c.u | c.d) and "nochk" not in c.text:
                                raise ValueError(f"pending load {p.text!r} touched by {c.text!r}")
                    if c.vmem: vq.append(c)
                    if c.ds: lq.append(c)
                    if c.smem: sq.append(c)
            out.append(c)
        if verbose: print("instructions", sum(1 for i in out if not (i.label or i.directive)), "pad states", npad)
        return "".join((i.text if (i.label or i.directive) else "    " + i.text) + "\n" for i in out)

def kernel_text(name, body, vgpr, accum, sgpr=102):
    t = f".globl {name}\n.p2align 8\n.type {name},@function\n{name}:\n{body}"
    d = f""".amdhsa_kernel {name}
  .amdhsa_next_free_vgpr {vgpr}
  .amdhsa_next_free_sgpr {sgpr}
  .amdhsa_accum_offset {accum}
  .amdhsa_group_segment_fixed_size 0
  .amdhsa_kernarg_size 120
  .amdhsa_user_sgpr_count 2
  .amdhsa_user_sgpr_kernarg_segment_ptr 1
  .amdhsa_system_sgpr_workgroup_id_x 1
.end_amdhsa_kernel
"""
    return t, d
```

```python
KN = "adaLN_cond__ssm_conv_s4d__dense_activation_relu__prompt"
HEADER = open("cdna_kernels/" + KN + ".s.ref").read().split("; Override launch")[0]
class Asm:
    def __init__(self): self.L = []; self.nlab = 0
    def __call__(self, s):
        for l in s.strip("\n").split("\n"): self.L.append("    " + l.strip() if not l.strip().endswith(":") else l.strip())
    def label(self, p="L"):
        self.nlab += 1; return f"{p}_{self.nlab}"
    def text(self): return "\n".join(self.L) + "\n"
def kernel_text(name, body, vgpr, accum, sgpr=102):
    t = f".globl {name}\n.p2align 8\n.type {name},@function\n{name}:\n{body}    s_endpgm\n"
    d = f""".amdhsa_kernel {name}
  .amdhsa_next_free_vgpr {vgpr}
  .amdhsa_next_free_sgpr {sgpr}
  .amdhsa_accum_offset {accum}
  .amdhsa_group_segment_fixed_size 0
  .amdhsa_kernarg_size 120
  .amdhsa_user_sgpr_count 2
  .amdhsa_user_sgpr_kernarg_segment_ptr 1
  .amdhsa_system_sgpr_workgroup_id_x 1
.end_amdhsa_kernel
"""
    return t, d
def file_text(kernels, launches):
    s = HEADER + "".join(f"; @launch {l}\n" for l in launches)
    s += '.amdgcn_target "amdgcn-amd-amdhsa--gfx950"\n.text\n'
    s += "".join(k[0] for k in kernels)
    s += '.section .rodata,"a"\n' + "".join(".p2align 6\n" + k[1] for k in kernels)
    return s
```

```python
import sys
from asm2 import *

EPOCH = 0; STATS = 0x1000; MODG = 0x5000; FLAGS = 0x8000; PS = 0x10000
W1T = 0x100000; W2T = 0x280000; U = 0x400000; X2 = 0x600000; H = 0x800000
HG = 43 * 4096
OOB = 0x9000000; DBG = 0x1000000; STAMP_OFF = 0x8000000
TROW = 528; TCH = 60 * TROW
L_U = 0; L_K = 65536; KCP = 4160; KCH = 2 * KCP
L_H = 82176; HPAR = 2304; HCH = 2 * HPAR
L_RED = 91392; RW = 10240
L_X2 = 132352; L_MOD = 140544; L_R2 = 65536
LDS_BYTES = 142592
sW, sR, sTAG, sLDT, sD, sSPIN = "s3", "s40", "s41", "s42", "s43", "s48"
WS = "s[32:35]"; WJ = "s[36:39]"
def k4(k): return "0" if k == 0 else f"s{48 + k}"
GEXP = list(range(9)) + [256, 258, 260, 262, 264, 512, 516, 520, 768, 772, 776, 1024, 1032, 1280, 1288, 1536, 1544, 1792, 1800]

SKIP = {"karg", "wmod", "presync", "cst"}
def v(i, n=1): return f"v{i}" if n == 1 else f"v[{i}:{i+n-1}]"
def ar(i, n=1): return f"a{i}" if n == 1 else f"a[{i}:{i+n-1}]"

def page_delta(pg, e):
    if pg == 0: return e
    if pg == 1: return [0, 0, 2, 4, 4, 4, 6, 8, 8][e]
    if pg < 4: return [0, 0, 0, 4, 4, 4, 8, 8, 8][e]
    return [0, 0, 0, 0, 0, 8, 8, 8, 8][e]
def gtable():
    t = []
    for wp in range(2):
        for rho in range(32):
            i, h, r = rho >> 3, (rho >> 2) & 1, rho & 3
            ri = 4 * i + r; pg0 = 4 * wp + 2 * h
            if ri < 8: ex = 256 * pg0 + page_delta(pg0, ri)
            elif ri == 9: ex = 256 * pg0 + 8
            else: ex = 256 * (pg0 + 1) + page_delta(pg0 + 1, ri - 8)
            t.append((32 + GEXP.index(ex)) * TROW)
    return t

def rr(a, streams):
    while any(streams):
        for s in streams:
            if s: a(s.pop(0))

def gen(stop=99, stamps=False, ncode=2):
    a = Asm(); tail = []
    nst = [0]; names = []
    def stamp(name):
        if stamps and name not in SKIP:
            i = nst[0]; nst[0] += 1; assert i < 16; names.append(name)
            a(f"s_memrealtime s[{70+2*i}:{71+2*i}]")
    def poll(loads, check, tag):
        lr, lb = a.label("L_retry"), a.label("L_back")
        a.wvm(tag)
        for c in check: a(c)
        a(f"s_cbranch_vccnz {lr}\n{lb}:")
        tail.append((lr, lb, loads, check))
    def finish_kernel():
        if stamps:
            a("s_waitcnt vmcnt(0) lgkmcnt(0)")
            stamp("end")
            a(f"s_waitcnt lgkmcnt(0)\ns_lshl_b32 s44, {sR}, 2\ns_add_u32 s44, s44, {sW}\ns_lshl_b32 s44, s44, 7\ns_add_u32 s44, s44, {STAMP_OFF}\nv_mov_b32 v1, 0\ns_mov_b64 exec, 1")
            for i in range(nst[0]): a(f"v_mov_b32 v2, s{70+2*i}\nbuffer_store_dword v2, v1, {WS}, s44 offen offset:{4*i}")
            a(f"v_mov_b32 v2, {sSPIN}\nbuffer_store_dword v2, v1, {WS}, s44 offen offset:124")
        if stamps: print("stamps:", names)
        a("L_end:\ns_endpgm")
        for lr, lb, loads, check in tail:
            a(f"{lr}:\ns_cmp_eq_u32 {sSPIN}, 0\ns_cbranch_scc1 {lb}\ns_sub_u32 {sSPIN}, {sSPIN}, 1\ns_nop 1")
            for l in loads: a(l)
            a("s_waitcnt vmcnt(0)")
            for c in check: a(c)
            a(f"s_cbranch_vccnz {lr}\ns_branch {lb}")
        a(".p2align 6\n.type L_tab,@object\nL_tab:")
        a(".short " + ", ".join(str(x) for x in gtable()))
        a("L_tabend:")
        k = kernel_text(KN + "_kernel", a.finish(), 512, 256)
        return file_text([k], [f"grid=(256,1,1) block=(256,1,1) lds={LDS_BYTES}"])
    def dump_lds(off, nbytes):
        a("s_waitcnt vmcnt(0) lgkmcnt(0)\ns_barrier")
        a(f"v_lshlrev_b32 v2, 4, v0\nv_add_u32 v3, {off}, v2\ns_lshl_b32 s44, {sR}, 18\ns_add_u32 s44, s44, {DBG}")
        for i in range((nbytes + 4095) // 4096):
            a(f"ds_read_b128 v[4:7], v3\nv_add_u32 v3, 4096, v3\ns_waitcnt lgkmcnt(0)\nbuffer_store_dwordx4 v[4:7], v2, {WS}, s44 offen\ns_add_u32 s44, s44, 4096\ns_waitcnt vmcnt(0)")

    stamp("start")
    a("s_cmp_ge_u32 s2, 256\ns_cbranch_scc1 L_end")
    a("s_load_dwordx16 s[4:19], s[0:1], 0\ns_load_dwordx8 s[20:27], s[0:1], 64\ns_load_dwordx2 s[28:29], s[0:1], 96\ns_load_dwordx2 s[30:31], s[0:1], 112")
    a("s_getpc_b64 s[44:45]\nL_pc:")
    a("v_lshlrev_b32 v2, 6, v0\nv_mov_b32 v3, s45")
    for k in range(ncode):
        a(f"v_add_u32 v4, {16384*k}, v2\nv_min_u32 v4, L_tabend-L_pc-4, v4\nv_add_co_u32 v4, vcc, s44, v4\nv_addc_co_u32 v5, vcc, 0, v3, vcc")
        a(f"global_load_dword v{100+k}, v[4:5], off", "cp")
    a("v_and_b32 v1, 63, v0\nv_lshrrev_b32 v6, 6, v0\nv_and_b32 v4, 31, v0\nv_and_b32 v7, 64, v0\nv_lshl_add_u32 v4, v4, 1, v7")
    a(f"v_readfirstlane_b32 {sW}, v6")
    a("v_add_u32 v4, L_tab-L_pc, v4\nv_add_co_u32 v4, vcc, s44, v4\nv_addc_co_u32 v5, vcc, 0, v3, vcc")
    a("global_load_ushort v18, v[4:5], off", "tab")
    a(f"s_and_b32 s44, s2, 7\ns_lshl_b32 s44, s44, 5\ns_lshr_b32 s45, s2, 3\ns_add_u32 {sR}, s44, s45")
    a(f"s_lshl_b32 s44, {sR}, 13\ns_lshl_b32 s45, {sW}, 11\ns_add_u32 s44, s44, s45\nv_lshl_add_u32 v2, v1, 4, s44")
    a(f"s_lshl_b32 s44, {sR}, 9\nv_lshl_add_u32 v3, v0, 1, s44")
    a(f"v_lshlrev_b32 v12, 1, v0")
    a(f"s_mul_i32 s44, {sR}, 24\ns_movk_i32 s45, 6144\nv_mov_b32 v13, s44\nv_mad_u32_u24 v13, v0, s45, v13\nv_add_u32 v14, 0x180000, v13")
    a(f"s_lshl_b32 s44, {sR}, 2\ns_add_u32 s45, s44, 4096\nv_lshl_add_u32 v19, v0, 13, s45")
    a(f"s_mul_i32 s46, {sR}, 3\ns_add_u32 s46, s46, {sW}\ns_cmp_eq_u32 {sW}, 3\ns_cselect_b32 s46, 1000, s46")
    a("s_waitcnt lgkmcnt(0)")
    stamp("karg")
    a("global_load_dwordx4 v[4:7], v2, s[4:5]\nglobal_load_dwordx4 v[8:11], v2, s[4:5] offset:1024", "xr")
    a(f"s_load_dword {sTAG}, s[30:31], {EPOCH}\ns_load_dword {sLDT}, s[14:15], s44\ns_load_dword {sD}, s[16:17], s44")
    a("s_cmp_lt_u32 s46, 352\ns_cselect_b32 s36, s20, s22\ns_cselect_b32 s37, s21, s23\ns_mov_b32 s38, 1409024\ns_mov_b32 s39, 0x20000")
    a("s_movk_i32 s63, 1024\ns_cselect_b32 s47, 2752, s63")
    a("s_lshr_b32 s64, s46, 4\ns_and_b32 s65, s46, 15")
    a("s_sub_u32 s66, s46, 352\ns_and_b32 s67, s66, 7\ns_lshr_b32 s66, s66, 3")
    a(f"s_lshl_b32 s68, s64, 16\ns_lshl_b32 s69, s65, 10\ns_add_u32 s68, s68, s69\ns_add_u32 s68, s68, {W1T}")
    a(f"s_mul_i32 s69, s67, 43\ns_add_u32 s69, s69, s66\ns_lshl_b32 s69, s69, 12\ns_add_u32 s69, s69, {W2T}")
    a("s_cmp_lt_u32 s46, 352\ns_cselect_b32 s64, s64, s67\ns_cselect_b32 s65, s65, s66\ns_cselect_b32 s68, s68, s69\ns_cselect_b32 s69, 16384, s63")
    a("s_mul_i32 s65, s65, s47\ns_lshl_b32 s65, s65, 5\ns_lshl_b32 s64, s64, 7\ns_add_u32 s64, s64, s65")
    a(f"s_cmp_lt_u32 s46, 696\ns_cselect_b32 s64, s64, {OOB}\ns_cselect_b32 s68, s68, {OOB}")
    a("v_lshrrev_b32 v15, 3, v1\nv_and_b32 v16, 7, v1\nv_lshlrev_b32 v16, 4, v16\nv_mad_u32_u24 v15, v15, s47, v16\ns_lshl_b32 s47, s47, 3")
    for it in range(4):
        a(f"buffer_load_dwordx4 {v(32+4*it,4)}, v15, {WJ}, s64 offen", "wr")
        if it < 3: a("s_add_u32 s64, s64, s47")
    a("global_load_ushort v16, v12, s[24:25]\nglobal_load_ushort v17, v12, s[24:25] offset:512", "c")
    a("global_load_dwordx4 v[20:23], v13, s[26:27]\nglobal_load_dwordx2 v[24:25], v13, s[26:27] offset:16", "wm")
    a("global_load_dwordx4 v[28:31], v14, s[26:27] offset:8\nglobal_load_dwordx2 v[26:27], v14, s[26:27]", "wm")
    for i in range(4): a(f"global_load_ushort v{12+i}, v3, s[{6+2*i}:{7+2*i}]", "kp")
    a("s_mov_b32 s32, s30\ns_mov_b32 s33, s31\ns_mov_b32 s34, 0x9000000\ns_mov_b32 s35, 0x20000")
    a(f"v_lshrrev_b32 v2, 3, v0\nv_lshlrev_b32 v2, 16, v2\nv_and_b32 v3, 7, v0\nv_lshl_add_u32 v2, v3, 4, v2\ns_lshl_b32 s44, {sR}, 8\nv_add_u32 v2, s44, v2")
    for i in range(4): a(f"v_mov_b32 v{72+i}, -1")
    a(f"s_mov_b32 s44, {U}\ns_mov_b32 s45, {X2}")
    for s in ("s44", "s45"):
        for o in (0, 128): a(f"buffer_store_dwordx4 v[72:75], v2, {WS}, {s} offen offset:{o} sc1", "pf")
    a(f"s_lshl_b32 s44, {sR}, 9\ns_lshl_b32 s45, {sW}, 7\ns_add_u32 s44, s44, s45\ns_add_u32 s44, s44, {PS}\nv_lshlrev_b32 v3, 4, v1\ns_mov_b64 exec, 0xff")
    a(f"buffer_store_dwordx4 v[72:75], v3, {WS}, s44 offen sc1", "pf")
    a("s_mov_b64 exec, -1")
    for j in range(4): a(f"global_load_dword v{48+j}, v19, s[4:5] offset:{1024*j-4096}", "xc")
    for k in range(1, 16): a(f"s_movk_i32 {k4(k)}, {4096*k}" if k < 8 else f"s_mov_b32 {k4(k)}, {4096*k}")
    a(f"s_mov_b32 {sSPIN}, 100000")
    for i in range(4): a(f"v_mov_b32 v{76+i}, 0")
    a(f"v_lshrrev_b32 v80, 4, v1\nv_and_b32 v81, 15, v1\nv_mul_u32_u24 v82, {HPAR}, v80\nv_lshl_add_u32 v82, v81, 4, v82\nv_add_u32 v82, {L_H}, v82")
    a(f"v_mul_u32_u24 v83, {KCP}, v80\nv_and_b32 v84, 1, v1\nv_lshl_add_u32 v83, v84, 4, v83\nv_add_u32 v83, {L_K + 4096}, v83")
    a("ds_write_b128 v82, v[76:79]\nds_write_b128 v83, v[76:79]")
    a(f"s_mul_i32 s44, {sW}, {RW}\ns_add_u32 s44, s44, {L_RED}\nv_lshl_add_u32 v84, v1, 4, s44")
    a("v_and_b32 v85, 16, v1\nv_lshlrev_b32 v85, 6, v85\nv_and_b32 v86, 32, v1\nv_lshl_add_u32 v85, v86, 4, v85\nv_and_b32 v86, 12, v1\nv_lshl_add_u32 v85, v86, 5, v85")
    a("v_and_b32 v86, 3, v1\nv_lshl_add_u32 v85, v86, 4, v85\nv_add_u32 v85, s44, v85")
    a("s_mov_b32 s44, 0x3f803f80\ns_mov_b32 s45, 0x3b000000")
    a.wvm("xr")
    stamp("xrows")
    for i in range(4):
        for (d, x, y) in ((88, 4 + i, None), (89, 4 + i, 4 + i), (90, 8 + i, None), (91, 8 + i, 8 + i)):
            a(f"v_dot2_f32_bf16 v{d}, v{x}, {'s44' if y is None else v(y)}, {0 if i == 0 else v(d)}")
    a("v_permlane32_swap_b32 v88, v90\nv_permlane32_swap_b32 v89, v91\nv_add_f32 v88, v88, v90\nv_add_f32 v89, v89, v91")
    a("v_permlane16_swap_b32 v88, v89\nv_add_f32 v88, v88, v89")
    for sh in (8, 4, 2, 1): a(f"v_add_f32_dpp v88, v88, v88 row_ror:{sh} row_mask:0xf bank_mask:0xf")
    a("v_mul_f32 v88, s45, v88\nv_mov_b32 v89, v88\nv_permlane16_swap_b32 v88, v89")
    a("v_fma_f32 v89, -v88, v88, v89\nv_max_f32 v89, 0, v89\nv_mov_b32 v90, v88")
    a("v_cvt_pk_bf16_f32 v89, v89, v89\nv_lshlrev_b32 v89, 16, v89\nv_add_f32 v89, 0x3727c5ac, v89\nv_permlane32_swap_b32 v88, v90")
    a("v_cvt_pk_bf16_f32 v89, v89, v89\nv_lshlrev_b32 v89, 16, v89\nv_sqrt_f32 v89, v89\nv_cvt_pk_bf16_f32 v94, v88, v90")
    a("v_cvt_pk_bf16_f32 v89, v89, v89\nv_lshlrev_b32 v89, 16, v89\nv_rcp_f32 v92, v89")
    a(f"s_waitcnt lgkmcnt(0)\ns_add_u32 {sTAG}, {sTAG}, 1\nv_mov_b32 v93, v92\nv_mov_b32 v95, {sTAG}")
    a(f"s_lshl_b32 s44, {sW}, 12\ns_lshl_b32 s45, {sR}, 4\ns_add_u32 s44, s44, s45\ns_add_u32 s44, s44, {STATS}")
    a("v_permlane32_swap_b32 v92, v93\ns_mov_b64 exec, 1")
    a(f"buffer_store_dwordx4 v[92:95], v76, {WS}, s44 offen sc1", "st")
    a("s_mov_b64 exec, -1")
    stamp("stats")
    a.wvm("wr")
    for it in range(4): a(f"ds_write_b128 v84, {v(32+4*it,4)} offset:{1024*it}")
    a("s_waitcnt lgkmcnt(0)")
    for ct in range(4):
        for h in range(2): a(f"ds_read_b64_tr_b16 {v(32+4*ct+2*h,2)}, v85 offset:{2048*h + 64*(ct>>1) + 8*(ct&1)}", f"wt{ct}")
    for ct in range(4):
        a.wl(f"wt{ct}")
        a(f"buffer_store_dwordx4 {v(32+4*ct,4)}, v3, {WS}, s68 offen sc1", "wst")
        if ct < 3: a("s_add_u32 s68, s68, s69")
    for j in range(4, 8): a(f"global_load_dword v{48+j}, v19, s[4:5] offset:{1024*j-4096}", "xc")
    a.wvm("wm")
    stamp("wmod")
    a("v_lshlrev_b32 v16, 16, v16\nv_lshlrev_b32 v17, 16, v17\nv_mul_f32 v88, 0xbfb8aa3b, v16\nv_mul_f32 v89, 0xbfb8aa3b, v17\nv_exp_f32 v88, v88\nv_exp_f32 v89, v89")
    a("s_mov_b32 s44, 0x05040100\ns_mov_b32 s45, 0x07060302")
    a("v_add_f32 v88, 1.0, v88\nv_add_f32 v89, 1.0, v89\nv_rcp_f32 v88, v88\nv_rcp_f32 v89, v89")
    for j in range(6): a(f"v_perm_b32 v{104+2*j}, v{26+j}, v{20+j}, s44\nv_perm_b32 v{105+2*j}, v{26+j}, v{20+j}, s45")
    a("v_mul_f32 v88, v88, v16\nv_mul_f32 v89, v89, v17\nv_cvt_pk_bf16_f32 v88, v88, v89")
    for j in range(12): a(f"v_dot2_f32_bf16 v{104+j}, v{104+j}, v88, 0")
    for i in range(6): a(f"v_permlane32_swap_b32 v{104+i}, v{110+i}")
    for i in range(6): a(f"v_add_f32 v{104+i}, v{104+i}, v{110+i}")
    for i in range(3): a(f"v_permlane16_swap_b32 v{104+i}, v{107+i}")
    for i in range(3): a(f"v_add_f32 v{104+i}, v{104+i}, v{107+i}")
    for sh in (8, 4, 2, 1):
        for i in range(3): a(f"v_add_f32_dpp v{104+i}, v{104+i}, v{104+i} row_ror:{sh} row_mask:0xf bank_mask:0xf")
    a(f"s_lshl_b32 s44, {sW}, 6\ns_add_u32 s44, s44, {L_RED + 8192}\nv_mul_u32_u24 v88, 12, v80\nv_add_u32 v88, s44, v88\ns_mov_b32 exec_lo, 0x00010001\ns_mov_b32 exec_hi, 0x00010001")
    a("ds_write2_b32 v88, v104, v105 offset0:0 offset1:1\nds_write_b32 v88, v106 offset:8\ns_mov_b64 exec, -1")
    a(f"v_and_b32 v89, 7, v1\nv_lshlrev_b32 v89, 3, v89\nv_add_u32 v90, {L_RED + 8192}, v89")
    a("s_waitcnt lgkmcnt(0)\ns_barrier")
    for w in range(4): a(f"ds_read_b64 {v(104+2*w,2)}, v90 offset:{64*w}", "mr")
    a.wvm("kp")
    a(f"s_lshl_b32 s44, {sLDT}, 16\ns_and_b32 s45, {sLDT}, 0xffff0000\ns_cmp_lt_u32 {sW}, 2\ns_cselect_b32 s44, s44, s45")
    a(f"s_lshl_b32 s46, {sD}, 16\ns_and_b32 s45, {sD}, 0xffff0000\ns_cmp_lt_u32 {sW}, 2\ns_cselect_b32 {sD}, s46, s45")
    a("v_mov_b32 v16, 0x3fb8aa3b\nv_mul_f32 v17, s44, v16")
    for i in range(4): a(f"v_lshlrev_b32 v{12+i}, 16, v{12+i}")
    a("v_mul_f32 v12, v16, v12\nv_exp_f32 v17, v17\nv_exp_f32 v12, v12")
    a.wl("mr")
    a("v_pk_add_f32 v[104:105], v[104:105], v[106:107]\nv_pk_add_f32 v[108:109], v[108:109], v[110:111]")
    a("v_cvt_pk_bf16_f32 v17, v17, v12")
    a("v_pk_add_f32 v[104:105], v[104:105], v[108:109]")
    a(f"s_mul_i32 s44, {sR}, 48\ns_add_u32 s44, s44, {MODG}\ns_cmp_eq_u32 {sW}, 3\ns_cselect_b32 s44, s44, {OOB}")
    a("v_cvt_pk_bf16_f32 v94, v104, v105\ns_mov_b64 exec, 0x3f")
    a(f"buffer_store_dwordx2 v[94:95], v89, {WS}, s44 offen sc1", "mst")
    a("s_mov_b64 exec, -1")
    stamp("modpub")
    a("v_and_b32 v12, 0xffff0000, v17\nv_lshlrev_b32 v17, 16, v17")
    a("v_mul_f32 v12, v12, v17\nv_mul_f32 v13, v13, v17\nv_add_f32 v17, v17, v17")
    a("v_mul_f32 v12, 0xbfb8aa3b, v12\nv_mul_f32 v13, 0.15915494, v13")
    Z1, Z8, Z16, Z256, G0 = 20, 22, 24, 26, 28
    a(f"v_mul_f32 v{G0}, v14, v17\nv_mul_f32 v{G0+1}, v15, -v17")
    st = []
    for i, (p, z, cj) in enumerate(((1.0, Z1, 1), (8.0, Z8, 0), (16.0, Z16, 0), (256.0, Z256, 1))):
        import struct
        pc = hex(struct.unpack("<I", struct.pack("<f", p))[0])
        t = 104 + 2 * i
        st.append([f"v_mul_f32 v{t}, {pc}, v12", f"v_mul_f32 v{t+1}, {pc}, v13", f"v_exp_f32 v{t}, v{t}", f"v_fract_f32 v{t+1}, v{t+1}",
                   f"v_cos_f32 v{z}, v{t+1}", f"v_sin_f32 v{z+1}, v{t+1}", f"v_mul_f32 v{z}, v{z}, v{t}",
                   f"v_mul_f32 v{z+1}, v{z+1}, {'-' if cj else ''}v{t}"])
    rr(a, st)
    a(f"s_lshr_b32 s44, {sW}, 1\ns_mul_i32 s44, s44, {TCH}\ns_and_b32 s45, {sW}, 1\ns_lshl_b32 s46, s45, 8\ns_add_u32 m0, s44, s46")
    def cmul(d, x, m, t):
        return [f"v_pk_mul_f32 {v(t,2)}, {v(x,2)}, {v(m,2)} op_sel:[0,0] op_sel_hi:[0,1]",
                f"v_pk_fma_f32 {v(d,2)}, {v(x,2)}, {v(m,2)}, {v(t,2)} op_sel:[1,1,0] op_sel_hi:[1,0,1] neg_lo:[0,1,0]"]
    def put(x, t, row): return [f"v_cvt_pk_bf16_f32 v{t}, v{x}, v{x+1}", f"ds_write_addtid_b32 v{t} offset:{row*TROW}"]
    grow = lambda e: 32 + GEXP.index(e)
    sE = ["v_mov_b32 v112, 0x3f80", "ds_write_addtid_b32 v112 offset:0"] + put(Z16, 113, 2)
    src = Z16
    for f in range(4, 32, 2): sE += cmul(30, src, Z16, 104) + put(30, 112 + (f >> 1 & 1), f); src = 30
    sO = put(Z8, 114, 1); src = Z8
    for f in range(3, 32, 2): sO += cmul(32, src, Z16, 106) + put(32, 114 + (f >> 1 & 1), f); src = 32
    keep = {2: 34, 4: 36, 6: 38, 8: 40}
    sX = []; src = G0
    for e in range(1, 9):
        d = keep.get(e, 42); sX += cmul(d, src, Z1, 108) + put(d, 116 + (e & 1), grow(e)); src = d
    for k in range(1, 8): sX += cmul(40, 40, Z256, 108) + put(40, 116 + (k & 1), grow(256 * k + 8))
    sY = put(G0, 118, grow(0)); src = G0
    for k in range(1, 8): sY += cmul(44, src, Z256, 110) + put(44, 118 + (k & 1), grow(256 * k)); src = 44
    sY += cmul(34, 34, Z256, 110) + put(34, 118, grow(258)) + cmul(38, 38, Z256, 110) + put(38, 119, grow(262))
    for k in range(1, 4): sY += cmul(36, 36, Z256, 110) + put(36, 118 + (k & 1 ^ 1), grow(256 * k + 4))
    rr(a, [sE, sO, sX, sY])
    a(f"v_and_b32 v21, 31, v1\nv_mul_u32_u24 v21, {TROW}, v21\nv_lshrrev_b32 v22, 5, v1\nv_lshl_add_u32 v22, v22, 4, s44\nv_add_u32 v21, v21, v22\nv_add_u32 v20, v18, v22")
    a.wvm("wst")
    a(f"s_lshl_b32 s46, {sR}, 4\ns_lshl_b32 s47, {sW}, 2\ns_add_u32 s46, s46, s47\ns_add_u32 s46, s46, {FLAGS}\ns_mov_b64 exec, 1")
    a(f"buffer_store_dword v95, v76, {WS}, s46 offen sc1", "fl")
    a("s_mov_b64 exec, -1")
    a("s_waitcnt lgkmcnt(0)\ns_barrier")
    stamp("chains")
    KA, KB, KD = 128, 192, 104
    def rdk(s_): a(f"ds_read_b128 {v(KA+4*s_,4)}, v20 offset:{32*s_}\nds_read_b128 {v(KB+4*s_,4)}, v21 offset:{32*s_}", f"k{s_}")
    for s_ in range(6): rdk(s_)
    a(f"v_and_b32 v22, 31, v1\nv_lshrrev_b32 v23, 5, v1\nv_lshl_add_u32 v22, v23, 6, v22\nv_lshlrev_b32 v22, 4, v22")
    a(f"s_lshr_b32 s44, {sW}, 1\ns_mul_i32 s44, s44, {KCH}\ns_lshl_b32 s46, s45, 11\ns_sub_u32 s46, s44, s46\ns_add_u32 s46, s46, {L_K + 255*16 - 512}\nv_sub_u32 v22, s46, v22")
    a(f"s_cmp_eq_u32 s45, 0\ns_cselect_b32 s46, 0, 0xaaaaaaaa\ns_cselect_b32 s64, 1, 0\ns_mov_b32 s47, s46\ns_mov_b32 s65, 0")
    a(f"v_mov_b32 v24, {sD}\nv_cndmask_b32 v23, 0, v24, s[64:65]\ns_add_u32 s66, s44, {L_K + KCP + 4096}\nv_mov_b32 v24, s66")
    for s_ in range(16):
        a.wl(f"k{s_}")
        a(f"v_mfma_f32_32x32x16_bf16 {v(KD,16)}, {v(KA+4*s_,4)}, {v(KB+4*s_,4)}, {0 if s_ == 0 else v(KD,16)}")
        if s_ + 6 < 16: rdk(s_ + 6)
    a(f"v_lshlrev_b32 v25, 4, v0\ns_lshl_b32 s66, {sR}, 3\nv_mov_b32 v26, s66")
    SW = 72
    sweep = [f"buffer_load_dwordx4 {v(SW+4*i,4)}, v25, {WS}, {k4(1+i)} offen sc1" for i in range(4)]
    sweep += [f"buffer_load_dwordx2 {v(SW+16,2)}, v26, {WS}, {k4(5)} offen sc1",
              f"buffer_load_dwordx2 {v(SW+18,2)}, v26, {WS}, {k4(5)} offen offset:2048 sc1",
              f"buffer_load_dwordx2 {v(SW+20,2)}, v26, {WS}, {k4(6)} offen sc1",
              f"buffer_load_dwordx2 {v(SW+22,2)}, v26, {WS}, {k4(7)} offen sc1",
              f"buffer_load_dwordx4 {v(SW+24,4)}, v25, {WS}, {k4(6)} offen offset:2048 sc1",
              f"buffer_load_dwordx4 {v(SW+28,4)}, v25, {WS}, {k4(8)} offen sc1"]
    for l in sweep: a(l, "sw")
    P0, P1 = KD, KD + 8
    a(f"v_add_f32 v{P0}, v{P0}, v23\nv_cndmask_b32 v{P0+4}, v{P0+4}, v{P0+5}, s[46:47]\nv_cndmask_b32 v{P1+4}, v{P1+4}, v{P1+5}, s[46:47]")
    t0 = [P0 + e for e in range(8)] + [P1 + 1]
    t1 = [P1, P1] + [P1 + e for e in range(2, 8)] + [P1 + 7]
    for i, (t, sh, off) in enumerate(((t0, 0, 512), (t0, 1, 512 + KCP), (t1, 0, 0), (t1, 1, KCP))):
        d = 28 + 4 * i
        for q in range(4): a(f"v_cvt_pk_bf16_f32 v{d+q}, v{t[7-2*q+sh]}, v{t[6-2*q+sh]}")
        a(f"ds_write_b128 v22, {v(d,4)} offset:{off}")
    a(f"v_cvt_pk_bf16_f32 v23, v{P0}, 0\ns_mov_b64 exec, s[64:65]\nds_write_b32 v24, v23\ns_mov_b64 exec, -1")
    a("v_and_b32 v20, 15, v1\nv_add_u32 v21, 1, v20\nv_lshrrev_b32 v21, 1, v21\nv_lshrrev_b32 v27, 4, v1\nv_lshlrev_b32 v27, 2, v27\nv_sub_u32 v21, v27, v21\nv_lshlrev_b32 v21, 2, v21")
    a(f"v_and_b32 v20, 1, v20\nv_mul_u32_u24 v20, {KCP}, v20\nv_sub_u32 v21, v21, v20")
    a(f"s_lshl_b32 s46, s45, 8\ns_sub_u32 s46, s44, s46\ns_add_u32 s46, s46, {L_K + KCP + 4*(1016 - 48 - 128)}\nv_add_u32 v20, s46, v21")
    a("s_waitcnt lgkmcnt(0)")
    for i in range(1, 4): a(f"v_add_u32 v{20+i}, {-1024*i}, v20")
    a("s_barrier")
    stamp("kgen")
    if stop == 1:
        dump_lds(L_K, 2 * KCH); return finish_kernel()
    def Afr(rho, aa, n=4, o=0):
        i = rho * 8 + aa
        return ar(4 * i + o, n) if i < 16 else v(128 + 4 * (i - 16) + o, n)
    for rho in range(4):
        for aa in range(8):
            o = 16 * (3 - rho) + 128 * (1 - (aa & 1))
            a(f"ds_read2_b32 {Afr(rho,aa,2,0)}, v{20+(aa>>1)} offset0:{o} offset1:{o+1}\nds_read2_b32 {Afr(rho,aa,2,2)}, v{20+(aa>>1)} offset0:{o+2} offset1:{o+3}", "af")
    XF = 56
    a.wvm("xc")
    for j in range(8): a(f"v_lshlrev_b32 v{XF+2*j}, 16, v{48+j}\nv_and_b32 v{XF+2*j+1}, 0xffff0000, v{48+j}")
    a(f"v_and_b32 v24, 1, v0\nv_mul_u32_u24 v24, {HPAR}, v24\nv_lshrrev_b32 v27, 1, v0\nv_lshl_add_u32 v24, v27, 4, v24\nv_add_u32 v24, {L_H + 15*16}, v24")
    a(f"v_and_b32 v27, 15, v1\nv_lshrrev_b32 v28, 5, v1\nv_add_u32 v27, v27, v28\nv_lshlrev_b32 v27, 4, v27\nv_bfe_u32 v28, v1, 4, 1\nv_mul_u32_u24 v28, {HPAR}, v28")
    a(f"s_lshr_b32 s44, {sW}, 1\ns_mul_i32 s44, s44, {HCH}\ns_lshl_b32 s46, s45, 7\ns_sub_u32 s44, s44, s46\ns_add_u32 s44, s44, {L_H + 14*16 - 96}\nv_add3_u32 v27, v27, v28, s44")
    a(f"v_lshlrev_b32 v28, 3, v0\nv_add_u32 v28, {L_MOD}, v28\ns_cmp_lt_u32 {sW}, 2\ns_cselect_b32 s46, 0, 1.0")
    stamp("presync")
    tags = [SW + 3, SW + 7, SW + 11, SW + 15, SW + 17, SW + 19, SW + 21, SW + 23, SW + 25, SW + 27, SW + 28, SW + 29, SW + 30, SW + 31]
    chk = [f"v_xor_b32 v29, {sTAG}, v{tags[0]}"] + [f"v_bitop3_b32 v29, v29, v{t}, {sTAG} bitop3:0xf6" for t in tags[1:]] + ["v_cmp_ne_u32 vcc, 0, v29"]
    poll(sweep, chk, "sw")
    stamp("sync1")
    SA, CA, GA, CB = 32, 34, 36, 38
    for d, s_ in ((CA, SW + 18), (CB, SW + 22), (SA, SW + 16), (GA, SW + 20)):
        a(f"v_lshlrev_b32 v{d}, 16, v{s_}\nv_and_b32 v{d+1}, 0xffff0000, v{s_}")
    for d in (CA, CB):
        a(f"v_pk_add_f32 {v(d,2)}, {v(d,2)}, 1.0 op_sel_hi:[1,0]\nv_cvt_pk_bf16_f32 v{d+1}, v{d}, v{d+1}\nv_lshlrev_b32 v{d}, 16, v{d+1}\nv_and_b32 v{d+1}, 0xffff0000, v{d+1}")
    HT = 104
    for i in range(4): a(f"v_lshlrev_b32 v{40+2*i}, 16, v{SW+4*i+2}\nv_and_b32 v{41+2*i}, 0xffff0000, v{SW+4*i+2}")
    for j in range(8):
        e = j & 1
        a(f"v_pk_add_f32 {v(HT+2*j,2)}, {v(XF+2*j,2)}, {v(40+2*(j>>1),2)} op_sel:[0,{e}] op_sel_hi:[1,{e}] neg_lo:[0,1] neg_hi:[0,1]")
    for j in range(8):
        e = j & 1
        a(f"v_pk_mul_f32 {v(HT+2*j,2)}, {v(HT+2*j,2)}, {v(SW+4*(j>>1),2)} op_sel:[0,{e}] op_sel_hi:[1,{e}]")
    for j in range(8): a(f"v_pk_fma_f32 {v(HT+2*j,2)}, {v(HT+2*j,2)}, {v(CA,2)}, {v(SA,2)}")
    for c in range(2):
        for q in range(4): a(f"v_cvt_pk_bf16_f32 v{40+4*c+q}, v{HT+4*q+c}, v{HT+4*q+2+c}")
        a(f"ds_write_b128 v24, {v(40+4*c,4)} offset:{HCH*c}")
    for i, s_ in enumerate((SW + 24, SW + 26)):
        a(f"v_lshlrev_b32 v48, 16, v{s_}\nv_and_b32 v49, 0xffff0000, v{s_}\nv_add_f32 v48, s46, v48\nv_add_f32 v49, s46, v49\nv_cvt_pk_bf16_f32 v{50+i}, v48, v49")
    a("ds_write_b64 v28, v[50:51]")
    a("s_waitcnt lgkmcnt(0)\ns_barrier")
    stamp("hgen")
    if stop == 2:
        dump_lds(L_H, 2 * HCH); return finish_kernel()
    BF = [192, 224]; ACC = 72
    def rdB(rho, b): a(f"ds_read_b128 {v(BF[rho&1]+4*b,4)}, v27 offset:{256*b + 32*(3-rho)}", f"B{rho}_{b}")
    for b in range(8): rdB(0, b)
    a(f"s_lshr_b32 s44, {sR}, 3\ns_and_b32 s45, {sR}, 7\ns_mul_i32 s46, s45, 11\ns_cmp_eq_u32 s45, 7\ns_cselect_b32 s46, 76, s46\ns_cmp_lt_u32 s45, 6\ns_cselect_b32 s47, 11, 10\ns_add_u32 s47, s47, s46")
    a(f"s_mul_i32 s64, {sW}, 3\ns_add_u32 s46, s46, s64")
    a(f"s_mul_i32 s64, s44, {HG}\ns_add_u32 s64, s64, {H}")
    a("v_and_b32 v4, 31, v1\nv_lshlrev_b32 v4, 4, v4\nv_lshrrev_b32 v5, 5, v1\nv_lshl_add_u32 v4, v5, 10, v4")
    for t in range(3):
        a(f"s_add_u32 s65, s46, {t}\ns_lshl_b32 s66, s65, 14\ns_add_u32 s66, s66, {W1T}\ns_lshr_b32 s67, s65, 1\ns_lshl_b32 s67, s67, 12\ns_and_b32 s68, s65, 1\ns_lshl_b32 s68, s68, 9\ns_add_u32 s67, s67, s68\ns_add_u32 s67, s67, s64")
        a(f"s_cmp_lt_u32 s65, s47\ns_cselect_b32 s66, s66, {OOB}\ns_cselect_b32 s67, s67, {OOB}\nv_add_u32 v{8+t}, s66, v3\nv_add_u32 v{12+t}, s67, v4")
    for i in range(4): a(f"v_mov_b32 v{28+i}, -1")
    fill = []
    a(f"s_or_b32 s65, {sR}, {sW}\ns_cmp_eq_u32 s65, 0\ns_cselect_b32 s65, 0, {OOB}\nv_mov_b32 v5, {sTAG}\nv_mov_b32 v6, 0")
    fill.append((f"buffer_store_dword v5, v6, {WS}, s65 offen sc1", "ep"))
    for t in range(3):
        for p in range(2): fill.append((f"buffer_store_dwordx4 v[28:31], v{12+t}, {WS}, 0 offen offset:{2048*p} sc1", "hpf"))
    def W1fr(ks, t): return ar(64 + 12 * ks + 4 * t, 4)
    w1loads = [(f"buffer_load_dwordx4 {W1fr(ks,t)}, v{8+t}, {WS}, {k4(ks>>2)} offen offset:{1024*(ks&3)} sc1", f"w1_{ks}") for ks in range(16) for t in range(3)]
    NW1C = 24
    fill += w1loads[:NW1C]
    a(f"v_lshrrev_b32 v24, 4, v1\nv_mul_u32_u24 v24, 320, v24\nv_and_b32 v25, 15, v1\nv_lshl_add_u32 v24, v25, 4, v24\ns_mul_i32 s66, {sW}, {RW}\ns_add_u32 s66, s66, {L_RED}\nv_add_u32 v24, s66, v24")
    a(f"v_lshrrev_b32 v25, 5, v0\nv_mul_u32_u24 v25, 1280, v25\nv_bfe_u32 v26, v0, 1, 4\nv_lshl_add_u32 v25, v26, 4, v25\nv_and_b32 v26, 1, v0\nv_mul_u32_u24 v26, 640, v26\nv_add_u32 v25, v25, v26\nv_add_u32 v25, {L_RED}, v25")
    nm = 0
    for rho in range(4):
        if rho < 3: order = [(aa, b) for b in range(8) for aa in range(8 - b)]
        else: order = [(nt - b, b) for nt in range(8) for b in range(nt + 1)]
        seen = set(); nxt = list(range(8)) if rho < 3 else []
        pend = []
        for i, (aa, b) in enumerate(order):
            if b not in seen:
                seen.add(b)
                if rho == 0 or (b == 0): a.wl(f"B{rho}_{b if rho == 0 else 7}")
            nt = aa + b
            c_ = 0 if (rho == 0 and b == 0) else v(ACC + 4 * nt, 4)
            a(f"v_mfma_f32_16x16x32_bf16 {v(ACC+4*nt,4)}, {Afr(rho,aa)}, {v(BF[rho&1]+4*b,4)}, {c_}")
            nm += 1
            if nxt and i >= 8 and i % 2 == 0: rdB(rho + 1, nxt.pop(0))
            if fill and nm % 4 == 1: a(*fill.pop(0))
            if rho == 3:
                if aa == 0: pend.append((i + 8, nt))
                while pend and pend[0][0] <= i:
                    nt2 = pend.pop(0)[1]; a(f"ds_write_b128 v24, {v(ACC+4*nt2,4)} offset:{1280*nt2}")
        for _, nt2 in pend: a(f"ds_write_b128 v24, {v(ACC+4*nt2,4)} offset:{1280*nt2}")
    assert not fill
    a.wvm("hpf")
    a("s_waitcnt lgkmcnt(0)\ns_barrier")
    stamp("conv")
    Y = 104
    for c in range(2):
        for p in range(2):
            for hf in range(2): a(f"ds_read_b128 {v(Y+16*c+8*p+4*hf,4)}, v25 offset:{(2*c+p)*RW + 320*hf}", f"y{c}")
    a(f"s_mov_b32 s66, {U}\ns_mov_b32 s67, {X2}")
    for c in range(2):
        a.wl(f"y{c}")
        y = Y + 16 * c
        for q in range(4): a(f"v_pk_add_f32 {v(y+2*q,2)}, {v(y+2*q,2)}, {v(y+8+2*q,2)}")
        for j in range(8): a(f"v_fma_f32 v{y+j}, v{y+j}, v{GA+c}, v{XF+2*j+c}")
        for q in range(4): a(f"v_pk_mul_f32 {v(y+8+2*q,2)}, {v(y+2*q,2)}, {v(CB,2)} op_sel:[0,{c}] op_sel_hi:[1,{c}]")
        for q in range(4): a(f"v_cvt_pk_bf16_f32 v{40+4*c+q}, v{y+8+2*q}, v{y+9+2*q}")
        a(f"buffer_store_dwordx4 {v(40+4*c,4)}, v2, {WS}, s66 offen offset:{128*c} sc1", "ust")
    for c in range(2):
        y = Y + 16 * c
        for q in range(4): a(f"v_cvt_pk_bf16_f32 v{48+4*c+q}, v{y+2*q}, v{y+1+2*q}")
        a(f"buffer_store_dwordx4 {v(48+4*c,4)}, v2, {WS}, s67 offen offset:{128*c} sc1", "ust")
    stamp("upub")
    if stop == 3: return finish_kernel()
    for l in w1loads[NW1C:]: a(*l)
    UST = 128; XST = 192
    a(f"s_lshl_b32 s66, s44, 16\ns_add_u32 s66, s66, {U}\nv_lshl_add_u32 v16, v0, 4, s66\ns_lshl_b32 s67, s45, 13\ns_add_u32 s67, s67, {X2 - U}\nv_add_u32 v17, s67, v16")
    xl = [f"buffer_load_dwordx4 {v(XST+4*i,4)}, v17, {WS}, {k4(i)} offen sc1" for i in range(2)]
    ul = [f"buffer_load_dwordx4 {v(UST+4*i,4)}, v16, {WS}, {k4(i)} offen sc1" for i in range(16)]
    for l in xl + ul[:4]: a(l, "u0")
    for c in range(1, 4):
        for l in ul[4*c:4*c+4]: a(l, f"u{c}")
    a("v_lshrrev_b32 v18, 3, v0\nv_bfe_u32 v19, v0, 4, 1\nv_bfe_u32 v20, v0, 6, 1\nv_lshl_add_u32 v19, v20, 1, v19\nv_bfe_u32 v20, v0, 1, 2\nv_xor_b32 v19, v19, v20\nv_lshlrev_b32 v19, 5, v19")
    a(f"v_lshl_add_u32 v18, v18, 7, v19\nv_and_b32 v19, 1, v0\nv_lshl_add_u32 v18, v19, 4, v18\nv_add_u32 v19, {L_X2}, v18")
    a("v_and_b32 v26, 16, v1\nv_lshlrev_b32 v26, 6, v26\nv_and_b32 v27, 12, v1\nv_lshl_add_u32 v26, v27, 5, v26\nv_and_b32 v27, 3, v1\nv_lshl_add_u32 v26, v27, 3, v26")
    a("v_bfe_u32 v27, v1, 3, 2\nv_lshl_add_u32 v26, v27, 5, v26\nv_and_b32 v27, 32, v1")
    a("v_lshl_add_u32 v20, v27, 4, v26")
    for rt in range(1, 4): a(f"v_xor_b32 v{20+rt}, {32*rt}, v20")
    a(f"v_lshl_add_u32 v24, v27, 6, v26\ns_lshl_b32 s66, {sW}, 5\nv_xor_b32 v24, s66, v24\nv_add_u32 v24, {L_X2}, v24")
    a(f"v_and_b32 v25, 16, v1\nv_lshrrev_b32 v26, 2, v27\nv_add_u32 v25, v25, v26\nv_and_b32 v26, 1, v1\nv_lshlrev_b32 v26, 10, v26\nv_sub_u32 v25, v25, v26\nv_add_u32 v25, {L_MOD + 1024}, v25")
    CT = 28
    for ks in range(16): a(f"ds_read2_b64 {v(56+4*ks,4)}, v25 offset0:{8*ks} offset1:{8*ks+4}", f"mt{ks}")
    for ks in range(16):
        a.wl(f"mt{ks}")
        if ks % 4 == 0: a.wvm(f"w1_{ks+3}")
        for t in range(3): a(f"v_mfma_f32_16x16x32_bf16 {v(CT+4*t,4)}, {W1fr(ks,t)}, {v(56+4*ks,4)}, {0 if ks == 0 else v(CT+4*t,4)}")
    stamp("cst")
    def sent(regs, acc):
        L = []; r = list(regs)
        L.append(f"v_max3_u32 v{acc}, v{r[0]}, v{r[1]}, v{r[2]}"); r = r[3:]
        while len(r) >= 2: L.append(f"v_max3_u32 v{acc}, v{acc}, v{r[0]}, v{r[1]}"); r = r[2:]
        if r: L.append(f"v_max_u32 v{acc}, v{acc}, v{r[0]}")
        return L + [f"v_cmp_eq_u32 vcc, -1, v{acc}"]
    def ustage(c):
        if c == 0: poll(xl + ul[:4], sent(list(range(XST, XST + 8)) + list(range(UST, UST + 16)), 26), "u0")
        else: poll(ul[4*c:4*c+4], sent(range(UST + 16 * c, UST + 16 * c + 16), 26), f"u{c}")
        for i in range(4 * c, 4 * c + 4): a(f"ds_write_b128 v18, {v(UST+4*i,4)} offset:{4096*i}")
        if c == 0:
            for i in range(2): a(f"ds_write_b128 v19, {v(XST+4*i,4)} offset:{4096*i}")
    for c in range(4): ustage(c)
    a("s_waitcnt lgkmcnt(0)\ns_barrier")
    stamp("uarr")
    XR = 40
    for ct in range(4): a(f"ds_read_b64_tr_b16 {v(XR+2*ct,2)}, v24 offset:{4096*(ct>>1) + 512*(ct&1)}", "xres")
    B1 = [200, 216]; A1 = 56
    def rdU(ks, rt): a(f"ds_read_b64_tr_b16 {v(B1[ks&1]+4*rt,2)}, v{20+rt} offset:{4096*ks}\nds_read_b64_tr_b16 {v(B1[ks&1]+4*rt+2,2)}, v{20+rt} offset:{4096*ks+2048}", f"U{ks}_{rt}")
    for rt in range(4): rdU(0, rt)
    a("s_mov_b32 s66, 0x3f803f80")
    a.wl("xres")
    for i in range(8): a(f"v_dot2_f32_bf16 v48, v{XR+i}, s66, {0 if i == 0 else 'v48'}\nv_dot2_f32_bf16 v49, v{XR+i}, v{XR+i}, {0 if i == 0 else 'v49'}")
    a("v_permlane32_swap_b32 v48, v49\nv_add_f32 v48, v48, v49\nv_mov_b32 v49, v48\nv_permlane16_swap_b32 v48, v49\nv_add_f32 v48, v48, v49\nv_mov_b32 v49, v48\nv_permlane32_swap_b32 v48, v49")
    a(f"s_lshl_b32 s66, {sR}, 9\ns_lshl_b32 s67, {sW}, 7\ns_add_u32 s66, s66, s67\ns_add_u32 s66, s66, {PS}\nv_lshlrev_b32 v26, 3, v1\ns_mov_b64 exec, 0xffff")
    a(f"buffer_store_dwordx2 v[48:49], v26, {WS}, s66 offen sc1", "pst")
    a("s_mov_b64 exec, -1")
    a(f"s_mul_i32 s66, s45, 43\ns_mul_i32 s67, {sW}, 11\ns_add_u32 s66, s66, s67\ns_lshl_b32 s66, s66, 12\ns_add_u32 s66, s66, {W2T}\nv_add_u32 v16, s66, v3")
    a(f"s_cmp_eq_u32 {sW}, 3\ns_cselect_b32 s66, {OOB}, s66\nv_add_u32 v17, s66, v3")
    def W2fr(s_, ct): return ar(16 * s_ + 4 * ct, 4)
    w2loads = [(f"buffer_load_dwordx4 {W2fr(s_,ct)}, v{17 if s_ == 10 else 16}, {WS}, {k4(s_)} offen offset:{1024*ct} sc1", f"w2_{s_}") for s_ in range(11) for ct in range(4)]
    PSR = 104
    a(f"s_lshl_b32 s66, s44, 12\ns_add_u32 s66, s66, {PS}")
    psl = [f"buffer_load_dwordx2 {v(PSR+2*m,2)}, v26, {WS}, s66 offen offset:{512*m} sc1" for m in range(8)]
    GB = 120
    a(f"s_lshl_b32 s67, s45, 8\ns_add_u32 s67, s67, {MODG + 1280*8}\nv_lshrrev_b32 v27, 4, v1\nv_lshlrev_b32 v27, 5, v27")
    nw2 = 0
    for ks in range(16):
        for rt in range(4):
            a.wl(f"U{ks}_{rt}")
            for t in range(3):
                d = v(A1 + 16 * t + 4 * rt, 4)
                a(f"v_mfma_f32_16x16x32_bf16 {d}, {W1fr(ks,t)}, {v(B1[ks&1]+4*rt,4)}, {0 if ks == 0 else d}")
                if t == 0 and ks < 15: rdU(ks + 1, rt)
                if t == 1 and rt < 3 and nw2 < 44 and 4 * nw2 + 4 <= 64 + 12 * ks and ks != 10:
                    a(*w2loads[nw2]); nw2 += 1
                if ks == 10 and t > 0: a(psl[2 * rt + t - 1], "ps")
    for l in w2loads[nw2:]: a(*l)
    stamp("gemm1")
    poll(psl, sent(range(PSR, PSR + 16), 27 + 0 * 0) if False else sent(range(PSR, PSR + 16), 50), "ps")
    for m in (4, 2, 1):
        for i in range(m): a(f"v_pk_add_f32 {v(PSR+2*i,2)}, {v(PSR+2*i,2)}, {v(PSR+2*i+2*m,2)}")
    a(f"v_mul_f32 v48, 0x3b000000, v{PSR}\nv_mul_f32 v49, 0x3b000000, v{PSR+1}\nv_fma_f32 v49, -v48, v48, v49\nv_max_f32 v49, 0, v49")
    a("v_cvt_pk_bf16_f32 v49, v49, v48\nv_and_b32 v48, 0xffff0000, v49\nv_lshlrev_b32 v49, 16, v49\nv_add_f32 v49, 0x3727c5ac, v49")
    a("v_cvt_pk_bf16_f32 v49, v49, v49\nv_lshlrev_b32 v49, 16, v49\nv_sqrt_f32 v49, v49\nv_cvt_pk_bf16_f32 v49, v49, v49\nv_lshlrev_b32 v49, 16, v49\nv_rcp_f32 v49, v49")
    MR = 104
    for e in range(2):
        a(f"v_mov_b32 v{MR+e}, v{48+e}\nv_mov_b32 v{MR+4+e}, v{48+e}")
    for e in range(2): a(f"v_permlane32_swap_b32 v{MR+e}, v{MR+4+e}")
    for e in range(2): a(f"v_mov_b32 v{MR+2+e}, v{MR+e}\nv_mov_b32 v{MR+6+e}, v{MR+4+e}")
    for e in range(2): a(f"v_permlane16_swap_b32 v{MR+e}, v{MR+2+e}\nv_permlane16_swap_b32 v{MR+4+e}, v{MR+6+e}")
    CS, TT = 136, 148
    for i in range(12):
        a(f"v_mov_b32_dpp v{CS+i}, v{CT+i} quad_perm:[0,0,2,2] row_mask:0xf bank_mask:0xf\nv_mov_b32_dpp v{TT+i}, v{CT+i} quad_perm:[1,1,3,3] row_mask:0xf bank_mask:0xf")
    HO = 160
    for t in range(3):
        for p in range(2):
            o = HO + 8 * t + 4 * p
            for rt in (2 * p, 2 * p + 1):
                for q in range(2):
                    d = v(A1 + 16 * t + 4 * rt + 2 * q, 2)
                    a(f"v_pk_fma_f32 {d}, {v(CS+4*t+2*q,2)}, {v(MR+2*rt,2)}, {d} op_sel:[0,0,0] op_sel_hi:[1,0,1] neg_lo:[0,1,0] neg_hi:[0,1,0]")
            for rt in (2 * p, 2 * p + 1):
                for q in range(2):
                    d = v(A1 + 16 * t + 4 * rt + 2 * q, 2)
                    a(f"v_pk_fma_f32 {d}, {d}, {v(MR+2*rt,2)}, {v(TT+4*t+2*q,2)} op_sel:[0,1,0] op_sel_hi:[1,1,1]")
            for rt in (2 * p, 2 * p + 1):
                for q in range(2):
                    s_ = A1 + 16 * t + 4 * rt + 2 * q
                    a(f"v_cvt_pk_bf16_f32 v{o+2*(rt&1)+q}, v{s_}, v{s_+1}")
            for q in range(4): a(f"v_pk_max_i16 v{o+q}, v{o+q}, 0")
            a(f"v_permlane32_swap_b32 v{o}, v{o+2}\nv_permlane32_swap_b32 v{o+1}, v{o+3}")
            a(f"buffer_store_dwordx4 {v(o,4)}, v{12+t}, {WS}, 0 offen offset:{2048*p} sc1", "hst")
    stamp("hpub")
    if stop == 4: return finish_kernel()
    GBR = [4, 28, 32, 36]
    a("s_mov_b32 s69, s67")
    gbl = [f"buffer_load_dwordx4 {v(GBR[i],4)}, v27, {WS}, s69 offen offset:{128*(i>>1) + 16*(i&1)} sc1" for i in range(4)]
    for l in gbl: a(l, "gb")
    HF = 64
    a(f"s_mul_i32 s66, {sW}, {11*4096}\ns_add_u32 s64, s64, s66")
    hl = []
    for p in range(4):
        a(f"s_add_u32 s66, {sW}, {p+1}\ns_and_b32 s66, s66, 3\ns_lshl_b32 s67, s66, 10\ns_add_u32 s67, s67, s64\nv_add_u32 v{8+p}, s67, v3")
        if p < 3: a(f"s_mul_i32 s66, s66, 12288\ns_add_u32 s66, s66, {L_R2 + 4096*p}\nv_add_u32 v{16+p}, s66, v3")
        hl.append([f"buffer_load_dwordx4 {v(HF+44*p+4*s_,4)}, v{8+p}, {WS}, {k4(s_) if s_ < 10 else 's65'} offen sc1" for s_ in range(11)])
    a(f"s_cmp_eq_u32 {sW}, 3\ns_cselect_b32 s65, {OOB}, {k4(10)}")
    a(f"s_mul_i32 s66, {sW}, 12288\ns_add_u32 s66, s66, {L_R2}\nv_add_u32 v19, s66, v3")
    for p in range(4):
        for l in hl[p]: a(l, f"h{p}")
    a(f"s_lshl_b32 s66, s44, 16\ns_lshl_b32 s67, {sW}, 14\ns_add_u32 s66, s66, s67\ns_lshl_b32 s67, s45, 7\ns_add_u32 s66, s66, s67")
    a("v_and_b32 v20, 15, v1\nv_lshlrev_b32 v20, 10, v20\nv_and_b32 v21, 48, v1\nv_add3_u32 v20, v20, v21, s66")
    gt = [g + o for g in GBR for o in (1, 3)]
    poll(gbl, [f"v_xor_b32 v21, {sTAG}, v{gt[0]}"] + [f"v_bitop3_b32 v21, v21, v{t}, {sTAG} bitop3:0xf6" for t in gt[1:]] + ["v_cmp_ne_u32 vcc, 0, v21"], "gb")
    A2 = 240
    def acc2(p, ct): return ar(176 + 16 * p + 4 * ct, 4) if p < 3 else v(A2 + 4 * ct, 4)
    for p in range(4):
        poll(hl[p], sent(range(HF + 44 * p, HF + 44 * p + 44), 21), f"h{p}")
        if p == 0: stamp("harr")
        n = 0
        for s_ in range(11):
            for ct in range(4):
                d = acc2(p, ct)
                a(f"v_mfma_f32_16x16x32_bf16 {d}, {W2fr(s_,ct)}, {v(HF+44*p+4*s_,4)}, {0 if s_ == 0 else d}")
                n += 1
                if p > 0 and n in (1, 3, 5, 7):
                    c2 = n >> 1; a(f"ds_write_b128 v{16+p-1}, {acc2(p-1,c2)} offset:{1024*c2}")
                if p == 3 and n == 14: a("s_waitcnt lgkmcnt(0)\ns_barrier")
                if p == 3 and 14 <= n < 26:
                    i = n - 14; a(f"ds_read_b128 {v(HF+4*i,4)}, v19 offset:{1024*i}", "r2")
                if p == 3 and n == 28: a.wl("r2")
                if p == 3 and 28 <= n < 44:
                    i = n - 28; a(f"v_add_f32 v{HF+i}, v{HF+i}, v{HF+16+i}\nv_add_f32 v{HF+i}, v{HF+i}, v{HF+32+i}")
    stamp("gemm2")
    T = HF + 16
    for ct in range(4):
        g0 = GBR[ct]
        a(f"v_lshlrev_b32 v{T+4*ct}, 16, v{g0}\nv_and_b32 v{T+4*ct+1}, 0xffff0000, v{g0}\nv_lshlrev_b32 v{T+4*ct+2}, 16, v{g0+2}\nv_and_b32 v{T+4*ct+3}, 0xffff0000, v{g0+2}")
    for i in range(8): a(f"v_lshlrev_b32 v{T+16+2*i}, 16, v{XR+i}\nv_and_b32 v{T+17+2*i}, 0xffff0000, v{XR+i}")
    for i in range(8): a(f"v_pk_add_f32 {v(HF+2*i,2)}, {v(HF+2*i,2)}, {v(A2+2*i,2)}")
    for i in range(8): a(f"v_pk_fma_f32 {v(HF+2*i,2)}, {v(HF+2*i,2)}, {v(T+2*i,2)}, {v(T+16+2*i,2)}")
    for hh in range(2):
        for q in range(4): a(f"v_cvt_pk_bf16_f32 v{48+4*hh+q}, v{HF+8*hh+2*q}, v{HF+8*hh+2*q+1}")
        a(f"global_store_dwordx4 v20, {v(48+4*hh,4)}, s[28:29] offset:{64*hh}")
    return finish_kernel()

if __name__ == "__main__":
    stop = int(sys.argv[1]) if len(sys.argv) > 1 else 99
    stamps = len(sys.argv) > 2 and sys.argv[2] == "1"
    out = sys.argv[3] if len(sys.argv) > 3 else "k.s"
    open(out, "w").write(gen(stop, stamps))
```

```python
import sys
from asm2 import *

EPOCH = 0; STATS = 0x1000; MODG = 0x5000; FLAGS = 0x8000; PS = 0x10000
W1T = 0x100000; W2T = 0x280000; U = 0x400000; X2 = 0x600000; H = 0x800000
HG = 43 * 4096
OOB = 0x9000000; DBG = 0x1000000; STAMP_OFF = 0x8000000
TROW = 528; TCH = 60 * TROW
L_U = 0; L_K = 65536; KCP = 4160; KCH = 2 * KCP
L_H = 82176; HPAR = 2304; HCH = 2 * HPAR
L_RED = 91392; RW = 10240
L_X2 = 132352; L_MOD = 140544; L_R2 = 65536
LDS_BYTES = 142592
sW, sR, sTAG, sLDT, sD, sSPIN = "s3", "s40", "s41", "s42", "s43", "s48"
WS = "s[32:35]"; WJ = "s[36:39]"
def k4(k): return "0" if k == 0 else f"s{48 + k}"
GEXP = list(range(9)) + [256, 258, 260, 262, 264, 512, 516, 520, 768, 772, 776, 1024, 1032, 1280, 1288, 1536, 1544, 1792, 1800]

SKIP = {"karg", "wmod", "presync", "cst"}
def v(i, n=1): return f"v{i}" if n == 1 else f"v[{i}:{i+n-1}]"
def ar(i, n=1): return f"a{i}" if n == 1 else f"a[{i}:{i+n-1}]"

def page_delta(pg, e):
    if pg == 0: return e
    if pg == 1: return [0, 0, 2, 4, 4, 4, 6, 8, 8][e]
    if pg < 4: return [0, 0, 0, 4, 4, 4, 8, 8, 8][e]
    return [0, 0, 0, 0, 0, 8, 8, 8, 8][e]
def gtable():
    t = []
    for wp in range(2):
        for rho in range(32):
            i, h, r = rho >> 3, (rho >> 2) & 1, rho & 3
            ri = 4 * i + r; pg0 = 4 * wp + 2 * h
            if ri < 8: ex = 256 * pg0 + page_delta(pg0, ri)
            elif ri == 9: ex = 256 * pg0 + 8
            else: ex = 256 * (pg0 + 1) + page_delta(pg0 + 1, ri - 8)
            t.append((32 + GEXP.index(ex)) * TROW)
    return t

def rr(a, streams):
    while any(streams):
        for s in streams:
            if s: a(s.pop(0))

def gen(stop=99, stamps=False, ncode=2, probe=None):
    a = Asm(); tail = []
    nst = [0]; names = []
    def stamp(name):
        if stamps and name not in SKIP:
            i = nst[0]; nst[0] += 1; assert i < 16; names.append(name)
            a(f"s_memrealtime s[{70+2*i}:{71+2*i}]")
    def poll(loads, check, tag):
        lr, lb = a.label("L_retry"), a.label("L_back")
        a.wvm(tag)
        for c in check: a(c)
        a(f"s_cbranch_vccnz {lr}\n{lb}:")
        tail.append((lr, lb, loads, check))
    def finish_kernel():
        if stamps:
            a("s_waitcnt vmcnt(0) lgkmcnt(0)")
            stamp("end")
            a(f"s_waitcnt lgkmcnt(0)\ns_lshl_b32 s44, {sR}, 2\ns_add_u32 s44, s44, {sW}\ns_lshl_b32 s44, s44, 7\ns_add_u32 s44, s44, {STAMP_OFF}\nv_mov_b32 v1, 0\ns_mov_b64 exec, 1")
            for i in range(nst[0]): a(f"v_mov_b32 v2, s{70+2*i}\nbuffer_store_dword v2, v1, {WS}, s44 offen offset:{4*i}")
            a(f"v_mov_b32 v2, {sSPIN}\nbuffer_store_dword v2, v1, {WS}, s44 offen offset:124")
        if probe is not None:
            i = names.index(probe)
            a(f"s_add_u32 s44, s{70+2*i}, 4500\ns_mov_b32 s45, 20000\nL_probe:\ns_memrealtime s[46:47]\ns_waitcnt lgkmcnt(0)\ns_sub_u32 s45, s45, 1\ns_cbranch_scc1 L_end\ns_sub_u32 s46, s46, s44\ns_cmp_lt_i32 s46, 0\ns_cbranch_scc1 L_probe")
        if stamps: print("stamps:", names)
        a("L_end:\ns_endpgm")
        for lr, lb, loads, check in tail:
            a(f"{lr}:\ns_cmp_eq_u32 {sSPIN}, 0\ns_cbranch_scc1 {lb}\ns_sub_u32 {sSPIN}, {sSPIN}, 1\ns_nop 1")
            for l in loads: a(l)
            a("s_waitcnt vmcnt(0)")
            for c in check: a(c)
            a(f"s_cbranch_vccnz {lr}\ns_branch {lb}")
        a(".p2align 6\n.type L_tab,@object\nL_tab:")
        a(".short " + ", ".join(str(x) for x in gtable()))
        a("L_tabend:")
        k = kernel_text(KN + "_kernel", a.finish(), 512, 256)
        return file_text([k], [f"grid=(256,1,1) block=(256,1,1) lds={LDS_BYTES}"])
    def dump_lds(off, nbytes):
        a("s_waitcnt vmcnt(0) lgkmcnt(0)\ns_barrier")
        a(f"v_lshlrev_b32 v2, 4, v0\nv_add_u32 v3, {off}, v2\ns_lshl_b32 s44, {sR}, 18\ns_add_u32 s44, s44, {DBG}")
        for i in range((nbytes + 4095) // 4096):
            a(f"ds_read_b128 v[4:7], v3\nv_add_u32 v3, 4096, v3\ns_waitcnt lgkmcnt(0)\nbuffer_store_dwordx4 v[4:7], v2, {WS}, s44 offen\ns_add_u32 s44, s44, 4096\ns_waitcnt vmcnt(0)")

    stamp("start")
    a("s_cmp_ge_u32 s2, 256\ns_cbranch_scc1 L_end")
    a("s_load_dwordx16 s[4:19], s[0:1], 0\ns_load_dwordx8 s[20:27], s[0:1], 64\ns_load_dwordx2 s[28:29], s[0:1], 96\ns_load_dwordx2 s[30:31], s[0:1], 112")
    a("s_getpc_b64 s[44:45]\nL_pc:")
    a("v_lshlrev_b32 v2, 6, v0\nv_mov_b32 v3, s45")
    for k in range(ncode):
        a(f"v_add_u32 v4, {16384*k}, v2\nv_min_u32 v4, L_tabend-L_pc-4, v4\nv_add_co_u32 v4, vcc, s44, v4\nv_addc_co_u32 v5, vcc, 0, v3, vcc")
        a(f"global_load_dword v{100+k}, v[4:5], off", "cp")
    a("v_and_b32 v1, 63, v0\nv_lshrrev_b32 v6, 6, v0\nv_and_b32 v4, 31, v0\nv_and_b32 v7, 64, v0\nv_lshl_add_u32 v4, v4, 1, v7")
    a(f"v_readfirstlane_b32 {sW}, v6")
    a("v_add_u32 v4, L_tab-L_pc, v4\nv_add_co_u32 v4, vcc, s44, v4\nv_addc_co_u32 v5, vcc, 0, v3, vcc")
    a("global_load_ushort v18, v[4:5], off", "tab")
    a(f"s_and_b32 s44, s2, 7\ns_lshl_b32 s44, s44, 5\ns_lshr_b32 s45, s2, 3\ns_add_u32 {sR}, s44, s45")
    a(f"s_lshl_b32 s44, {sR}, 13\ns_lshl_b32 s45, {sW}, 11\ns_add_u32 s44, s44, s45\nv_lshl_add_u32 v2, v1, 4, s44")
    a(f"s_lshl_b32 s44, {sR}, 9\nv_lshl_add_u32 v3, v0, 1, s44")
    a(f"v_lshlrev_b32 v12, 1, v0")
    a(f"s_mul_i32 s44, {sR}, 24\ns_movk_i32 s45, 6144\nv_mov_b32 v13, s44\nv_mad_u32_u24 v13, v0, s45, v13\nv_add_u32 v14, 0x180000, v13")
    a(f"s_lshl_b32 s44, {sR}, 2\ns_add_u32 s45, s44, 4096\nv_lshl_add_u32 v19, v0, 13, s45")
    a(f"s_mul_i32 s46, {sR}, 3\ns_add_u32 s46, s46, {sW}\ns_cmp_eq_u32 {sW}, 3\ns_cselect_b32 s46, 1000, s46")
    a("s_waitcnt lgkmcnt(0)")
    stamp("karg")
    a("global_load_dwordx4 v[4:7], v2, s[4:5]\nglobal_load_dwordx4 v[8:11], v2, s[4:5] offset:1024", "xr")
    a(f"s_load_dword {sTAG}, s[30:31], {EPOCH}\ns_load_dword {sLDT}, s[14:15], s44\ns_load_dword {sD}, s[16:17], s44")
    a("s_cmp_lt_u32 s46, 352\ns_cselect_b32 s36, s20, s22\ns_cselect_b32 s37, s21, s23\ns_mov_b32 s38, 1409024\ns_mov_b32 s39, 0x20000")
    a("s_movk_i32 s63, 1024\ns_cselect_b32 s47, 2752, s63")
    a("s_lshr_b32 s64, s46, 4\ns_and_b32 s65, s46, 15")
    a("s_sub_u32 s66, s46, 352\ns_and_b32 s67, s66, 7\ns_lshr_b32 s66, s66, 3")
    a(f"s_lshl_b32 s68, s64, 16\ns_lshl_b32 s69, s65, 10\ns_add_u32 s68, s68, s69\ns_add_u32 s68, s68, {W1T}")
    a(f"s_mul_i32 s69, s67, 43\ns_add_u32 s69, s69, s66\ns_lshl_b32 s69, s69, 12\ns_add_u32 s69, s69, {W2T}")
    a("s_cmp_lt_u32 s46, 352\ns_cselect_b32 s64, s64, s67\ns_cselect_b32 s65, s65, s66\ns_cselect_b32 s68, s68, s69\ns_cselect_b32 s69, 16384, s63")
    a("s_mul_i32 s65, s65, s47\ns_lshl_b32 s65, s65, 5\ns_lshl_b32 s64, s64, 7\ns_add_u32 s64, s64, s65")
    a(f"s_cmp_lt_u32 s46, 696\ns_cselect_b32 s64, s64, {OOB}\ns_cselect_b32 s68, s68, {OOB}")
    a("v_lshrrev_b32 v15, 3, v1\nv_and_b32 v16, 7, v1\nv_lshlrev_b32 v16, 4, v16\nv_mad_u32_u24 v15, v15, s47, v16\ns_lshl_b32 s47, s47, 3")
    for it in range(4):
        a(f"buffer_load_dwordx4 {v(32+4*it,4)}, v15, {WJ}, s64 offen", "wr")
        if it < 3: a("s_add_u32 s64, s64, s47")
    a("global_load_ushort v16, v12, s[24:25]\nglobal_load_ushort v17, v12, s[24:25] offset:512", "c")
    a("global_load_dwordx4 v[20:23], v13, s[26:27]\nglobal_load_dwordx2 v[24:25], v13, s[26:27] offset:16", "wm")
    a("global_load_dwordx4 v[28:31], v14, s[26:27] offset:8\nglobal_load_dwordx2 v[26:27], v14, s[26:27]", "wm")
    for i in range(4): a(f"global_load_ushort v{12+i}, v3, s[{6+2*i}:{7+2*i}]", "kp")
    a("s_mov_b32 s32, s30\ns_mov_b32 s33, s31\ns_mov_b32 s34, 0x9000000\ns_mov_b32 s35, 0x20000")
    a(f"v_lshrrev_b32 v2, 3, v0\nv_lshlrev_b32 v2, 16, v2\nv_and_b32 v3, 7, v0\nv_lshl_add_u32 v2, v3, 4, v2\ns_lshl_b32 s44, {sR}, 8\nv_add_u32 v2, s44, v2")
    for i in range(4): a(f"v_mov_b32 v{72+i}, -1")
    a(f"s_mov_b32 s44, {U}\ns_mov_b32 s45, {X2}")
    for s in ("s44", "s45"):
        for o in (0, 128): a(f"buffer_store_dwordx4 v[72:75], v2, {WS}, {s} offen offset:{o} sc1", "pf")
    a(f"s_lshl_b32 s44, {sR}, 9\ns_lshl_b32 s45, {sW}, 7\ns_add_u32 s44, s44, s45\ns_add_u32 s44, s44, {PS}\nv_lshlrev_b32 v3, 4, v1\ns_mov_b64 exec, 0xff")
    a(f"buffer_store_dwordx4 v[72:75], v3, {WS}, s44 offen sc1", "pf")
    a("s_mov_b64 exec, -1")
    for j in range(4): a(f"global_load_dword v{48+j}, v19, s[4:5] offset:{1024*j-4096}", "xc")
    for k in range(1, 16): a(f"s_movk_i32 {k4(k)}, {4096*k}" if k < 8 else f"s_mov_b32 {k4(k)}, {4096*k}")
    a(f"s_mov_b32 {sSPIN}, 100000")
    for i in range(4): a(f"v_mov_b32 v{76+i}, 0")
    a(f"v_lshrrev_b32 v80, 4, v1\nv_and_b32 v81, 15, v1\nv_mul_u32_u24 v82, {HPAR}, v80\nv_lshl_add_u32 v82, v81, 4, v82\nv_add_u32 v82, {L_H}, v82")
    a(f"v_mul_u32_u24 v83, {KCP}, v80\nv_and_b32 v84, 1, v1\nv_lshl_add_u32 v83, v84, 4, v83\nv_add_u32 v83, {L_K + 4096}, v83")
    a("ds_write_b128 v82, v[76:79]\nds_write_b128 v83, v[76:79]")
    a(f"s_mul_i32 s44, {sW}, {RW}\ns_add_u32 s44, s44, {L_RED}\nv_lshl_add_u32 v84, v1, 4, s44")
    a("v_and_b32 v85, 16, v1\nv_lshlrev_b32 v85, 6, v85\nv_and_b32 v86, 32, v1\nv_lshl_add_u32 v85, v86, 4, v85\nv_and_b32 v86, 12, v1\nv_lshl_add_u32 v85, v86, 5, v85")
    a("v_and_b32 v86, 3, v1\nv_lshl_add_u32 v85, v86, 4, v85\nv_add_u32 v85, s44, v85")
    a("s_mov_b32 s44, 0x3f803f80\ns_mov_b32 s45, 0x3b000000")
    a.wvm("xr")
    stamp("xrows")
    for i in range(4):
        for (d, x, y) in ((88, 4 + i, None), (89, 4 + i, 4 + i), (90, 8 + i, None), (91, 8 + i, 8 + i)):
            a(f"v_dot2_f32_bf16 v{d}, v{x}, {'s44' if y is None else v(y)}, {0 if i == 0 else v(d)}")
    a("v_permlane32_swap_b32 v88, v90\nv_permlane32_swap_b32 v89, v91\nv_add_f32 v88, v88, v90\nv_add_f32 v89, v89, v91")
    a("v_permlane16_swap_b32 v88, v89\nv_add_f32 v88, v88, v89")
    for sh in (8, 4, 2, 1): a(f"v_add_f32_dpp v88, v88, v88 row_ror:{sh} row_mask:0xf bank_mask:0xf")
    a("v_mul_f32 v88, s45, v88\nv_mov_b32 v89, v88\nv_permlane16_swap_b32 v88, v89")
    a("v_fma_f32 v89, -v88, v88, v89\nv_max_f32 v89, 0, v89\nv_mov_b32 v90, v88")
    a("v_cvt_pk_bf16_f32 v89, v89, v89\nv_lshlrev_b32 v89, 16, v89\nv_add_f32 v89, 0x3727c5ac, v89\nv_permlane32_swap_b32 v88, v90")
    a("v_cvt_pk_bf16_f32 v89, v89, v89\nv_lshlrev_b32 v89, 16, v89\nv_sqrt_f32 v89, v89\nv_cvt_pk_bf16_f32 v94, v88, v90")
    a("v_cvt_pk_bf16_f32 v89, v89, v89\nv_lshlrev_b32 v89, 16, v89\nv_rcp_f32 v92, v89")
    a(f"s_waitcnt lgkmcnt(0)\ns_add_u32 {sTAG}, {sTAG}, 1\nv_mov_b32 v93, v92\nv_mov_b32 v95, {sTAG}")
    a(f"s_lshl_b32 s44, {sW}, 12\ns_lshl_b32 s45, {sR}, 4\ns_add_u32 s44, s44, s45\ns_add_u32 s44, s44, {STATS}")
    a("v_permlane32_swap_b32 v92, v93\ns_mov_b64 exec, 1")
    a(f"buffer_store_dwordx4 v[92:95], v76, {WS}, s44 offen sc1", "st")
    a("s_mov_b64 exec, -1")
    stamp("stats")
    a.wvm("wr")
    for it in range(4): a(f"ds_write_b128 v84, {v(32+4*it,4)} offset:{1024*it}")
    a("s_waitcnt lgkmcnt(0)")
    for ct in range(4):
        for h in range(2): a(f"ds_read_b64_tr_b16 {v(32+4*ct+2*h,2)}, v85 offset:{2048*h + 64*(ct>>1) + 8*(ct&1)}", f"wt{ct}")
    for ct in range(4):
        a.wl(f"wt{ct}")
        a(f"buffer_store_dwordx4 {v(32+4*ct,4)}, v3, {WS}, s68 offen sc1", "wst")
        if ct < 3: a("s_add_u32 s68, s68, s69")
    for j in range(4, 8): a(f"global_load_dword v{48+j}, v19, s[4:5] offset:{1024*j-4096}", "xc")
    a.wvm("wm")
    stamp("wmod")
    a("v_lshlrev_b32 v16, 16, v16\nv_lshlrev_b32 v17, 16, v17\nv_mul_f32 v88, 0xbfb8aa3b, v16\nv_mul_f32 v89, 0xbfb8aa3b, v17\nv_exp_f32 v88, v88\nv_exp_f32 v89, v89")
    a("s_mov_b32 s44, 0x05040100\ns_mov_b32 s45, 0x07060302")
    a("v_add_f32 v88, 1.0, v88\nv_add_f32 v89, 1.0, v89\nv_rcp_f32 v88, v88\nv_rcp_f32 v89, v89")
    for j in range(6): a(f"v_perm_b32 v{104+2*j}, v{26+j}, v{20+j}, s44\nv_perm_b32 v{105+2*j}, v{26+j}, v{20+j}, s45")
    a("v_mul_f32 v88, v88, v16\nv_mul_f32 v89, v89, v17\nv_cvt_pk_bf16_f32 v88, v88, v89")
    for j in range(12): a(f"v_dot2_f32_bf16 v{104+j}, v{104+j}, v88, 0")
    for i in range(6): a(f"v_permlane32_swap_b32 v{104+i}, v{110+i}")
    for i in range(6): a(f"v_add_f32 v{104+i}, v{104+i}, v{110+i}")
    for i in range(3): a(f"v_permlane16_swap_b32 v{104+i}, v{107+i}")
    for i in range(3): a(f"v_add_f32 v{104+i}, v{104+i}, v{107+i}")
    for sh in (8, 4, 2, 1):
        for i in range(3): a(f"v_add_f32_dpp v{104+i}, v{104+i}, v{104+i} row_ror:{sh} row_mask:0xf bank_mask:0xf")
    a(f"s_lshl_b32 s44, {sW}, 6\ns_add_u32 s44, s44, {L_RED + 8192}\nv_mul_u32_u24 v88, 12, v80\nv_add_u32 v88, s44, v88\ns_mov_b32 exec_lo, 0x00010001\ns_mov_b32 exec_hi, 0x00010001")
    a("ds_write2_b32 v88, v104, v105 offset0:0 offset1:1\nds_write_b32 v88, v106 offset:8\ns_mov_b64 exec, -1")
    a(f"v_and_b32 v89, 7, v1\nv_lshlrev_b32 v89, 3, v89\nv_add_u32 v90, {L_RED + 8192}, v89")
    a("s_waitcnt lgkmcnt(0)\ns_barrier")
    for w in range(4): a(f"ds_read_b64 {v(104+2*w,2)}, v90 offset:{64*w}", "mr")
    a.wvm("kp")
    a(f"s_lshl_b32 s44, {sLDT}, 16\ns_and_b32 s45, {sLDT}, 0xffff0000\ns_cmp_lt_u32 {sW}, 2\ns_cselect_b32 s44, s44, s45")
    a(f"s_lshl_b32 s46, {sD}, 16\ns_and_b32 s45, {sD}, 0xffff0000\ns_cmp_lt_u32 {sW}, 2\ns_cselect_b32 {sD}, s46, s45")
    a("v_mov_b32 v16, 0x3fb8aa3b\nv_mul_f32 v17, s44, v16")
    for i in range(4): a(f"v_lshlrev_b32 v{12+i}, 16, v{12+i}")
    a("v_mul_f32 v12, v16, v12\nv_exp_f32 v17, v17\nv_exp_f32 v12, v12")
    a.wl("mr")
    a("v_pk_add_f32 v[104:105], v[104:105], v[106:107]\nv_pk_add_f32 v[108:109], v[108:109], v[110:111]")
    a("v_cvt_pk_bf16_f32 v17, v17, v12")
    a("v_pk_add_f32 v[104:105], v[104:105], v[108:109]")
    a(f"s_mul_i32 s44, {sR}, 48\ns_add_u32 s44, s44, {MODG}\ns_cmp_eq_u32 {sW}, 3\ns_cselect_b32 s44, s44, {OOB}")
    a("v_cvt_pk_bf16_f32 v94, v104, v105\ns_mov_b64 exec, 0x3f")
    a(f"buffer_store_dwordx2 v[94:95], v89, {WS}, s44 offen sc1", "mst")
    a("s_mov_b64 exec, -1")
    stamp("modpub")
    a("v_and_b32 v12, 0xffff0000, v17\nv_lshlrev_b32 v17, 16, v17")
    a("v_mul_f32 v12, v12, v17\nv_mul_f32 v13, v13, v17\nv_add_f32 v17, v17, v17")
    a("v_mul_f32 v12, 0xbfb8aa3b, v12\nv_mul_f32 v13, 0.15915494, v13")
    Z1, Z8, Z16, Z256, G0 = 20, 22, 24, 26, 28
    a(f"v_mul_f32 v{G0}, v14, v17\nv_mul_f32 v{G0+1}, v15, -v17")
    st = []
    for i, (p, z, cj) in enumerate(((1.0, Z1, 1), (8.0, Z8, 0), (16.0, Z16, 0), (256.0, Z256, 1))):
        import struct
        pc = hex(struct.unpack("<I", struct.pack("<f", p))[0])
        t = 104 + 2 * i
        st.append([f"v_mul_f32 v{t}, {pc}, v12", f"v_mul_f32 v{t+1}, {pc}, v13", f"v_exp_f32 v{t}, v{t}", f"v_fract_f32 v{t+1}, v{t+1}",
                   f"v_cos_f32 v{z}, v{t+1}", f"v_sin_f32 v{z+1}, v{t+1}", f"v_mul_f32 v{z}, v{z}, v{t}",
                   f"v_mul_f32 v{z+1}, v{z+1}, {'-' if cj else ''}v{t}"])
    rr(a, st)
    a(f"s_lshr_b32 s44, {sW}, 1\ns_mul_i32 s44, s44, {TCH}\ns_and_b32 s45, {sW}, 1\ns_lshl_b32 s46, s45, 8\ns_add_u32 m0, s44, s46")
    def cmul(d, x, m, t):
        return [f"v_pk_mul_f32 {v(t,2)}, {v(x,2)}, {v(m,2)} op_sel:[0,0] op_sel_hi:[0,1]",
                f"v_pk_fma_f32 {v(d,2)}, {v(x,2)}, {v(m,2)}, {v(t,2)} op_sel:[1,1,0] op_sel_hi:[1,0,1] neg_lo:[0,1,0]"]
    def put(x, t, row): return [f"v_cvt_pk_bf16_f32 v{t}, v{x}, v{x+1}", f"ds_write_addtid_b32 v{t} offset:{row*TROW}"]
    grow = lambda e: 32 + GEXP.index(e)
    sE = ["v_mov_b32 v112, 0x3f80", "ds_write_addtid_b32 v112 offset:0"] + put(Z16, 113, 2)
    src = Z16
    for f in range(4, 32, 2): sE += cmul(30, src, Z16, 104) + put(30, 112 + (f >> 1 & 1), f); src = 30
    sO = put(Z8, 114, 1); src = Z8
    for f in range(3, 32, 2): sO += cmul(32, src, Z16, 106) + put(32, 114 + (f >> 1 & 1), f); src = 32
    keep = {2: 34, 4: 36, 6: 38, 8: 40}
    sX = []; src = G0
    for e in range(1, 9):
        d = keep.get(e, 42); sX += cmul(d, src, Z1, 108) + put(d, 116 + (e & 1), grow(e)); src = d
    for k in range(1, 8): sX += cmul(40, 40, Z256, 108) + put(40, 116 + (k & 1), grow(256 * k + 8))
    sY = put(G0, 118, grow(0)); src = G0
    for k in range(1, 8): sY += cmul(44, src, Z256, 110) + put(44, 118 + (k & 1), grow(256 * k)); src = 44
    sY += cmul(34, 34, Z256, 110) + put(34, 118, grow(258)) + cmul(38, 38, Z256, 110) + put(38, 119, grow(262))
    for k in range(1, 4): sY += cmul(36, 36, Z256, 110) + put(36, 118 + (k & 1 ^ 1), grow(256 * k + 4))
    rr(a, [sE, sO, sX, sY])
    a(f"v_and_b32 v21, 31, v1\nv_mul_u32_u24 v21, {TROW}, v21\nv_lshrrev_b32 v22, 5, v1\nv_lshl_add_u32 v22, v22, 4, s44\nv_add_u32 v21, v21, v22\nv_add_u32 v20, v18, v22")
    a.wvm("wst")
    a(f"s_lshl_b32 s46, {sR}, 4\ns_lshl_b32 s47, {sW}, 2\ns_add_u32 s46, s46, s47\ns_add_u32 s46, s46, {FLAGS}\ns_mov_b64 exec, 1")
    a(f"buffer_store_dword v95, v76, {WS}, s46 offen sc1", "fl")
    a("s_mov_b64 exec, -1")
    a("s_waitcnt lgkmcnt(0)\ns_barrier")
    stamp("chains")
    KA, KB, KD = 128, 192, 104
    def rdk(s_): a(f"ds_read_b128 {v(KA+4*s_,4)}, v20 offset:{32*s_}\nds_read_b128 {v(KB+4*s_,4)}, v21 offset:{32*s_}", f"k{s_}")
    for s_ in range(6): rdk(s_)
    a(f"v_and_b32 v22, 31, v1\nv_lshrrev_b32 v23, 5, v1\nv_lshl_add_u32 v22, v23, 6, v22\nv_lshlrev_b32 v22, 4, v22")
    a(f"s_lshr_b32 s44, {sW}, 1\ns_mul_i32 s44, s44, {KCH}\ns_lshl_b32 s46, s45, 11\ns_sub_u32 s46, s44, s46\ns_add_u32 s46, s46, {L_K + 255*16 - 512}\nv_sub_u32 v22, s46, v22")
    a(f"s_cmp_eq_u32 s45, 0\ns_cselect_b32 s46, 0, 0xaaaaaaaa\ns_cselect_b32 s64, 1, 0\ns_mov_b32 s47, s46\ns_mov_b32 s65, 0")
    a(f"v_mov_b32 v24, {sD}\nv_cndmask_b32 v23, 0, v24, s[64:65]\ns_add_u32 s66, s44, {L_K + KCP + 4096}\nv_mov_b32 v24, s66")
    for s_ in range(16):
        a.wl(f"k{s_}")
        a(f"v_mfma_f32_32x32x16_bf16 {v(KD,16)}, {v(KA+4*s_,4)}, {v(KB+4*s_,4)}, {0 if s_ == 0 else v(KD,16)}")
        if s_ + 6 < 16: rdk(s_ + 6)
    a(f"v_lshlrev_b32 v25, 4, v0\ns_lshl_b32 s66, {sR}, 3\nv_mov_b32 v26, s66")
    SW = 72
    sweep = [f"buffer_load_dwordx4 {v(SW+4*i,4)}, v25, {WS}, {k4(1+i)} offen sc1" for i in range(4)]
    sweep += [f"buffer_load_dwordx2 {v(SW+16,2)}, v26, {WS}, {k4(5)} offen sc1",
              f"buffer_load_dwordx2 {v(SW+18,2)}, v26, {WS}, {k4(5)} offen offset:2048 sc1",
              f"buffer_load_dwordx2 {v(SW+20,2)}, v26, {WS}, {k4(6)} offen sc1",
              f"buffer_load_dwordx2 {v(SW+22,2)}, v26, {WS}, {k4(7)} offen sc1",
              f"buffer_load_dwordx4 {v(SW+24,4)}, v25, {WS}, {k4(6)} offen offset:2048 sc1",
              f"buffer_load_dwordx4 {v(SW+28,4)}, v25, {WS}, {k4(8)} offen sc1"]
    for l in sweep: a(l, "sw")
    P0, P1 = KD, KD + 8
    a(f"v_add_f32 v{P0}, v{P0}, v23\nv_cndmask_b32 v{P0+4}, v{P0+4}, v{P0+5}, s[46:47]\nv_cndmask_b32 v{P1+4}, v{P1+4}, v{P1+5}, s[46:47]")
    t0 = [P0 + e for e in range(8)] + [P1 + 1]
    t1 = [P1, P1] + [P1 + e for e in range(2, 8)] + [P1 + 7]
    for i, (t, sh, off) in enumerate(((t0, 0, 512), (t0, 1, 512 + KCP), (t1, 0, 0), (t1, 1, KCP))):
        d = 28 + 4 * i
        for q in range(4): a(f"v_cvt_pk_bf16_f32 v{d+q}, v{t[7-2*q+sh]}, v{t[6-2*q+sh]}")
        a(f"ds_write_b128 v22, {v(d,4)} offset:{off}")
    a(f"v_cvt_pk_bf16_f32 v23, v{P0}, 0\ns_mov_b64 exec, s[64:65]\nds_write_b32 v24, v23\ns_mov_b64 exec, -1")
    a("v_and_b32 v20, 15, v1\nv_add_u32 v21, 1, v20\nv_lshrrev_b32 v21, 1, v21\nv_lshrrev_b32 v27, 4, v1\nv_lshlrev_b32 v27, 2, v27\nv_sub_u32 v21, v27, v21\nv_lshlrev_b32 v21, 2, v21")
    a(f"v_and_b32 v20, 1, v20\nv_mul_u32_u24 v20, {KCP}, v20\nv_sub_u32 v21, v21, v20")
    a(f"s_lshl_b32 s46, s45, 8\ns_sub_u32 s46, s44, s46\ns_add_u32 s46, s46, {L_K + KCP + 4*(1016 - 48 - 128)}\nv_add_u32 v20, s46, v21")
    a("s_waitcnt lgkmcnt(0)")
    for i in range(1, 4): a(f"v_add_u32 v{20+i}, {-1024*i}, v20")
    a("s_barrier")
    stamp("kgen")
    if stop == 1:
        dump_lds(L_K, 2 * KCH); return finish_kernel()
    def Afr(rho, aa, n=4, o=0):
        i = rho * 8 + aa
        return ar(4 * i + o, n) if i < 16 else v(128 + 4 * (i - 16) + o, n)
    for rho in range(4):
        for aa in range(8):
            o = 16 * (3 - rho) + 128 * (1 - (aa & 1))
            a(f"ds_read2_b32 {Afr(rho,aa,2,0)}, v{20+(aa>>1)} offset0:{o} offset1:{o+1}\nds_read2_b32 {Afr(rho,aa,2,2)}, v{20+(aa>>1)} offset0:{o+2} offset1:{o+3}", "af")
    XF = 56
    a.wvm("xc")
    for j in range(8): a(f"v_lshlrev_b32 v{XF+2*j}, 16, v{48+j}\nv_and_b32 v{XF+2*j+1}, 0xffff0000, v{48+j}")
    a(f"v_and_b32 v24, 1, v0\nv_mul_u32_u24 v24, {HPAR}, v24\nv_lshrrev_b32 v27, 1, v0\nv_lshl_add_u32 v24, v27, 4, v24\nv_add_u32 v24, {L_H + 15*16}, v24")
    a(f"v_and_b32 v27, 15, v1\nv_lshrrev_b32 v28, 5, v1\nv_add_u32 v27, v27, v28\nv_lshlrev_b32 v27, 4, v27\nv_bfe_u32 v28, v1, 4, 1\nv_mul_u32_u24 v28, {HPAR}, v28")
    a(f"s_lshr_b32 s44, {sW}, 1\ns_mul_i32 s44, s44, {HCH}\ns_lshl_b32 s46, s45, 7\ns_sub_u32 s44, s44, s46\ns_add_u32 s44, s44, {L_H + 14*16 - 96}\nv_add3_u32 v27, v27, v28, s44")
    a(f"v_lshlrev_b32 v28, 3, v0\nv_add_u32 v28, {L_MOD}, v28\ns_cmp_lt_u32 {sW}, 2\ns_cselect_b32 s46, 0, 1.0")
    stamp("presync")
    tags = [SW + 3, SW + 7, SW + 11, SW + 15, SW + 17, SW + 19, SW + 21, SW + 23, SW + 25, SW + 27, SW + 28, SW + 29, SW + 30, SW + 31]
    chk = [f"v_xor_b32 v29, {sTAG}, v{tags[0]}"] + [f"v_bitop3_b32 v29, v29, v{t}, {sTAG} bitop3:0xf6" for t in tags[1:]] + ["v_cmp_ne_u32 vcc, 0, v29"]
    poll(sweep, chk, "sw")
    stamp("sync1")
    SA, CA, GA, CB = 32, 34, 36, 38
    for d, s_ in ((CA, SW + 18), (CB, SW + 22), (SA, SW + 16), (GA, SW + 20)):
        a(f"v_lshlrev_b32 v{d}, 16, v{s_}\nv_and_b32 v{d+1}, 0xffff0000, v{s_}")
    for d in (CA, CB):
        a(f"v_pk_add_f32 {v(d,2)}, {v(d,2)}, 1.0 op_sel_hi:[1,0]\nv_cvt_pk_bf16_f32 v{d+1}, v{d}, v{d+1}\nv_lshlrev_b32 v{d}, 16, v{d+1}\nv_and_b32 v{d+1}, 0xffff0000, v{d+1}")
    HT = 104
    for i in range(4): a(f"v_lshlrev_b32 v{40+2*i}, 16, v{SW+4*i+2}\nv_and_b32 v{41+2*i}, 0xffff0000, v{SW+4*i+2}")
    for j in range(8):
        e = j & 1
        a(f"v_pk_add_f32 {v(HT+2*j,2)}, {v(XF+2*j,2)}, {v(40+2*(j>>1),2)} op_sel:[0,{e}] op_sel_hi:[1,{e}] neg_lo:[0,1] neg_hi:[0,1]")
    for j in range(8):
        e = j & 1
        a(f"v_pk_mul_f32 {v(HT+2*j,2)}, {v(HT+2*j,2)}, {v(SW+4*(j>>1),2)} op_sel:[0,{e}] op_sel_hi:[1,{e}]")
    for j in range(8): a(f"v_pk_fma_f32 {v(HT+2*j,2)}, {v(HT+2*j,2)}, {v(CA,2)}, {v(SA,2)}")
    for c in range(2):
        for q in range(4): a(f"v_cvt_pk_bf16_f32 v{40+4*c+q}, v{HT+4*q+c}, v{HT+4*q+2+c}")
        a(f"ds_write_b128 v24, {v(40+4*c,4)} offset:{HCH*c}")
    for i, s_ in enumerate((SW + 24, SW + 26)):
        a(f"v_lshlrev_b32 v48, 16, v{s_}\nv_and_b32 v49, 0xffff0000, v{s_}\nv_add_f32 v48, s46, v48\nv_add_f32 v49, s46, v49\nv_cvt_pk_bf16_f32 v{50+i}, v48, v49")
    a("ds_write_b64 v28, v[50:51]")
    a("s_waitcnt lgkmcnt(0)\ns_barrier")
    stamp("hgen")
    if stop == 2:
        dump_lds(L_H, 2 * HCH); return finish_kernel()
    BF = [192, 224]; ACC = 72
    def rdB(rho, b): a(f"ds_read_b128 {v(BF[rho&1]+4*b,4)}, v27 offset:{256*b + 32*(3-rho)}", f"B{rho}_{b}")
    for b in range(8): rdB(0, b)
    a(f"s_lshr_b32 s44, {sR}, 3\ns_and_b32 s45, {sR}, 7\ns_mul_i32 s46, s45, 11\ns_cmp_eq_u32 s45, 7\ns_cselect_b32 s46, 76, s46\ns_cmp_lt_u32 s45, 6\ns_cselect_b32 s47, 11, 10\ns_add_u32 s47, s47, s46")
    a(f"s_mul_i32 s64, {sW}, 3\ns_add_u32 s46, s46, s64")
    a(f"s_mul_i32 s64, s44, {HG}\ns_add_u32 s64, s64, {H}")
    a("v_and_b32 v4, 31, v1\nv_lshlrev_b32 v4, 4, v4\nv_lshrrev_b32 v5, 5, v1\nv_lshl_add_u32 v4, v5, 10, v4")
    for t in range(3):
        a(f"s_add_u32 s65, s46, {t}\ns_lshl_b32 s66, s65, 14\ns_add_u32 s66, s66, {W1T}\ns_lshr_b32 s67, s65, 1\ns_lshl_b32 s67, s67, 12\ns_and_b32 s68, s65, 1\ns_lshl_b32 s68, s68, 9\ns_add_u32 s67, s67, s68\ns_add_u32 s67, s67, s64")
        a(f"s_cmp_lt_u32 s65, s47\ns_cselect_b32 s66, s66, {OOB}\ns_cselect_b32 s67, s67, {OOB}\nv_add_u32 v{8+t}, s66, v3\nv_add_u32 v{12+t}, s67, v4")
    for i in range(4): a(f"v_mov_b32 v{28+i}, -1")
    fill = []
    a(f"s_or_b32 s65, {sR}, {sW}\ns_cmp_eq_u32 s65, 0\ns_cselect_b32 s65, 0, {OOB}\nv_mov_b32 v5, {sTAG}\nv_mov_b32 v6, 0")
    fill.append((f"buffer_store_dword v5, v6, {WS}, s65 offen sc1", "ep"))
    for t in range(3):
        for p in range(2): fill.append((f"buffer_store_dwordx4 v[28:31], v{12+t}, {WS}, 0 offen offset:{2048*p} sc1", "hpf"))
    def W1fr(ks, t): return ar(64 + 12 * ks + 4 * t, 4)
    w1loads = [(f"buffer_load_dwordx4 {W1fr(ks,t)}, v{8+t}, {WS}, {k4(ks>>2)} offen offset:{1024*(ks&3)} sc1", f"w1_{ks}") for ks in range(16) for t in range(3)]
    NW1C = 24
    fill += w1loads[:NW1C]
    a(f"v_lshrrev_b32 v24, 4, v1\nv_mul_u32_u24 v24, 320, v24\nv_and_b32 v25, 15, v1\nv_lshl_add_u32 v24, v25, 4, v24\ns_mul_i32 s66, {sW}, {RW}\ns_add_u32 s66, s66, {L_RED}\nv_add_u32 v24, s66, v24")
    a(f"v_lshrrev_b32 v25, 5, v0\nv_mul_u32_u24 v25, 1280, v25\nv_bfe_u32 v26, v0, 1, 4\nv_lshl_add_u32 v25, v26, 4, v25\nv_and_b32 v26, 1, v0\nv_mul_u32_u24 v26, 640, v26\nv_add_u32 v25, v25, v26\nv_add_u32 v25, {L_RED}, v25")
    nm = 0
    for rho in range(4):
        if rho < 3: order = [(aa, b) for b in range(8) for aa in range(8 - b)]
        else: order = [(nt - b, b) for nt in range(8) for b in range(nt + 1)]
        seen = set(); nxt = list(range(8)) if rho < 3 else []
        pend = []
        for i, (aa, b) in enumerate(order):
            if b not in seen:
                seen.add(b)
                if rho == 0 or (b == 0): a.wl(f"B{rho}_{b if rho == 0 else 7}")
            nt = aa + b
            c_ = 0 if (rho == 0 and b == 0) else v(ACC + 4 * nt, 4)
            a(f"v_mfma_f32_16x16x32_bf16 {v(ACC+4*nt,4)}, {Afr(rho,aa)}, {v(BF[rho&1]+4*b,4)}, {c_}")
            nm += 1
            if nxt and i >= 8 and i % 2 == 0: rdB(rho + 1, nxt.pop(0))
            if fill and nm % 4 == 1: a(*fill.pop(0))
            if rho == 3:
                if aa == 0: pend.append((i + 8, nt))
                while pend and pend[0][0] <= i:
                    nt2 = pend.pop(0)[1]; a(f"ds_write_b128 v24, {v(ACC+4*nt2,4)} offset:{1280*nt2}")
        for _, nt2 in pend: a(f"ds_write_b128 v24, {v(ACC+4*nt2,4)} offset:{1280*nt2}")
    assert not fill
    a.wvm("hpf")
    a("s_waitcnt lgkmcnt(0)\ns_barrier")
    stamp("conv")
    Y = 104
    for c in range(2):
        for p in range(2):
            for hf in range(2): a(f"ds_read_b128 {v(Y+16*c+8*p+4*hf,4)}, v25 offset:{(2*c+p)*RW + 320*hf}", f"y{c}")
    a(f"s_mov_b32 s66, {U}\ns_mov_b32 s67, {X2}")
    for c in range(2):
        a.wl(f"y{c}")
        y = Y + 16 * c
        for q in range(4): a(f"v_pk_add_f32 {v(y+2*q,2)}, {v(y+2*q,2)}, {v(y+8+2*q,2)}")
        for j in range(8): a(f"v_fma_f32 v{y+j}, v{y+j}, v{GA+c}, v{XF+2*j+c}")
        for q in range(4): a(f"v_pk_mul_f32 {v(y+8+2*q,2)}, {v(y+2*q,2)}, {v(CB,2)} op_sel:[0,{c}] op_sel_hi:[1,{c}]")
        for q in range(4): a(f"v_cvt_pk_bf16_f32 v{40+4*c+q}, v{y+8+2*q}, v{y+9+2*q}")
        a(f"buffer_store_dwordx4 {v(40+4*c,4)}, v2, {WS}, s66 offen offset:{128*c} sc1", "ust")
    for c in range(2):
        y = Y + 16 * c
        for q in range(4): a(f"v_cvt_pk_bf16_f32 v{48+4*c+q}, v{y+2*q}, v{y+1+2*q}")
        a(f"buffer_store_dwordx4 {v(48+4*c,4)}, v2, {WS}, s67 offen offset:{128*c} sc1", "ust")
    stamp("upub")
    if stop == 3: return finish_kernel()
    for l in w1loads[NW1C:]: a(*l)
    UST = 128; XST = 192
    a(f"s_lshl_b32 s66, s44, 16\ns_add_u32 s66, s66, {U}\nv_lshl_add_u32 v16, v0, 4, s66\ns_lshl_b32 s67, s45, 13\ns_add_u32 s67, s67, {X2 - U}\nv_add_u32 v17, s67, v16")
    xl = [f"buffer_load_dwordx4 {v(XST+4*i,4)}, v17, {WS}, {k4(i)} offen sc1" for i in range(2)]
    ul = [f"buffer_load_dwordx4 {v(UST+4*i,4)}, v16, {WS}, {k4(i)} offen sc1" for i in range(16)]
    for l in xl + ul[:4]: a(l, "u0")
    for c in range(1, 4):
        for l in ul[4*c:4*c+4]: a(l, f"u{c}")
    a("v_lshrrev_b32 v18, 3, v0\nv_bfe_u32 v19, v0, 4, 1\nv_bfe_u32 v20, v0, 6, 1\nv_lshl_add_u32 v19, v20, 1, v19\nv_bfe_u32 v20, v0, 1, 2\nv_xor_b32 v19, v19, v20\nv_lshlrev_b32 v19, 5, v19")
    a(f"v_lshl_add_u32 v18, v18, 7, v19\nv_and_b32 v19, 1, v0\nv_lshl_add_u32 v18, v19, 4, v18\nv_add_u32 v19, {L_X2}, v18")
    a("v_and_b32 v26, 16, v1\nv_lshlrev_b32 v26, 6, v26\nv_and_b32 v27, 12, v1\nv_lshl_add_u32 v26, v27, 5, v26\nv_and_b32 v27, 3, v1\nv_lshl_add_u32 v26, v27, 3, v26")
    a("v_bfe_u32 v27, v1, 3, 2\nv_lshl_add_u32 v26, v27, 5, v26\nv_and_b32 v27, 32, v1")
    a("v_lshl_add_u32 v20, v27, 4, v26")
    for rt in range(1, 4): a(f"v_xor_b32 v{20+rt}, {32*rt}, v20")
    a(f"v_lshl_add_u32 v24, v27, 6, v26\ns_lshl_b32 s66, {sW}, 5\nv_xor_b32 v24, s66, v24\nv_add_u32 v24, {L_X2}, v24")
    a(f"v_and_b32 v25, 16, v1\nv_lshrrev_b32 v26, 2, v27\nv_add_u32 v25, v25, v26\nv_and_b32 v26, 1, v1\nv_lshlrev_b32 v26, 10, v26\nv_sub_u32 v25, v25, v26\nv_add_u32 v25, {L_MOD + 1024}, v25")
    CT = 28
    for ks in range(16): a(f"ds_read2_b64 {v(56+4*ks,4)}, v25 offset0:{8*ks} offset1:{8*ks+4}", f"mt{ks}")
    for ks in range(16):
        a.wl(f"mt{ks}")
        if ks % 4 == 0: a.wvm(f"w1_{ks+3}")
        for t in range(3): a(f"v_mfma_f32_16x16x32_bf16 {v(CT+4*t,4)}, {W1fr(ks,t)}, {v(56+4*ks,4)}, {0 if ks == 0 else v(CT+4*t,4)}")
    stamp("cst")
    def sent(regs, acc):
        L = []; r = list(regs)
        L.append(f"v_max3_u32 v{acc}, v{r[0]}, v{r[1]}, v{r[2]}"); r = r[3:]
        while len(r) >= 2: L.append(f"v_max3_u32 v{acc}, v{acc}, v{r[0]}, v{r[1]}"); r = r[2:]
        if r: L.append(f"v_max_u32 v{acc}, v{acc}, v{r[0]}")
        return L + [f"v_cmp_eq_u32 vcc, -1, v{acc}"]
    def ustage(c):
        if c == 0: poll(xl + ul[:4], sent(list(range(XST, XST + 8)) + list(range(UST, UST + 16)), 26), "u0")
        else: poll(ul[4*c:4*c+4], sent(range(UST + 16 * c, UST + 16 * c + 16), 26), f"u{c}")
        for i in range(4 * c, 4 * c + 4): a(f"ds_write_b128 v18, {v(UST+4*i,4)} offset:{4096*i}")
        if c == 0:
            for i in range(2): a(f"ds_write_b128 v19, {v(XST+4*i,4)} offset:{4096*i}")
    for c in range(4): ustage(c)
    a("s_waitcnt lgkmcnt(0)\ns_barrier")
    stamp("uarr")
    XR = 40
    for ct in range(4): a(f"ds_read_b64_tr_b16 {v(XR+2*ct,2)}, v24 offset:{4096*(ct>>1) + 512*(ct&1)}", "xres")
    B1 = [200, 216]; A1 = 56
    def rdU(ks, rt): a(f"ds_read_b64_tr_b16 {v(B1[ks&1]+4*rt,2)}, v{20+rt} offset:{4096*ks}\nds_read_b64_tr_b16 {v(B1[ks&1]+4*rt+2,2)}, v{20+rt} offset:{4096*ks+2048}", f"U{ks}_{rt}")
    for rt in range(4): rdU(0, rt)
    a("s_mov_b32 s66, 0x3f803f80")
    a.wl("xres")
    for i in range(8): a(f"v_dot2_f32_bf16 v48, v{XR+i}, s66, {0 if i == 0 else 'v48'}\nv_dot2_f32_bf16 v49, v{XR+i}, v{XR+i}, {0 if i == 0 else 'v49'}")
    a("v_permlane32_swap_b32 v48, v49\nv_add_f32 v48, v48, v49\nv_mov_b32 v49, v48\nv_permlane16_swap_b32 v48, v49\nv_add_f32 v48, v48, v49\nv_mov_b32 v49, v48\nv_permlane32_swap_b32 v48, v49")
    a(f"s_lshl_b32 s66, {sR}, 9\ns_lshl_b32 s67, {sW}, 7\ns_add_u32 s66, s66, s67\ns_add_u32 s66, s66, {PS}\nv_lshlrev_b32 v26, 3, v1\ns_mov_b64 exec, 0xffff")
    a(f"buffer_store_dwordx2 v[48:49], v26, {WS}, s66 offen sc1", "pst")
    a("s_mov_b64 exec, -1")
    a(f"s_mul_i32 s66, s45, 43\ns_mul_i32 s67, {sW}, 11\ns_add_u32 s66, s66, s67\ns_lshl_b32 s66, s66, 12\ns_add_u32 s66, s66, {W2T}\nv_add_u32 v16, s66, v3")
    a(f"s_cmp_eq_u32 {sW}, 3\ns_cselect_b32 s66, {OOB}, s66\nv_add_u32 v17, s66, v3")
    def W2fr(s_, ct): return ar(16 * s_ + 4 * ct, 4)
    w2loads = [(f"buffer_load_dwordx4 {W2fr(s_,ct)}, v{17 if s_ == 10 else 16}, {WS}, {k4(s_)} offen offset:{1024*ct} sc1", f"w2_{s_}") for s_ in range(11) for ct in range(4)]
    PSR = 104
    a(f"s_lshl_b32 s66, s44, 12\ns_add_u32 s66, s66, {PS}")
    psl = [f"buffer_load_dwordx2 {v(PSR+2*m,2)}, v26, {WS}, s66 offen offset:{512*m} sc1" for m in range(8)]
    GB = 120
    a(f"s_lshl_b32 s67, s45, 8\ns_add_u32 s67, s67, {MODG + 1280*8}\nv_lshrrev_b32 v27, 4, v1\nv_lshlrev_b32 v27, 5, v27")
    nw2 = 0
    for ks in range(16):
        for rt in range(4):
            a.wl(f"U{ks}_{rt}")
            for t in range(3):
                d = v(A1 + 16 * t + 4 * rt, 4)
                a(f"v_mfma_f32_16x16x32_bf16 {d}, {W1fr(ks,t)}, {v(B1[ks&1]+4*rt,4)}, {0 if ks == 0 else d}")
                if t == 0 and ks < 15: rdU(ks + 1, rt)
                if t == 1 and rt < 3 and nw2 < 44 and 4 * nw2 + 4 <= 64 + 12 * ks and ks != 10:
                    a(*w2loads[nw2]); nw2 += 1
                if ks == 10 and t > 0: a(psl[2 * rt + t - 1], "ps")
    for l in w2loads[nw2:]: a(*l)
    stamp("gemm1")
    poll(psl, sent(range(PSR, PSR + 16), 27 + 0 * 0) if False else sent(range(PSR, PSR + 16), 50), "ps")
    for m in (4, 2, 1):
        for i in range(m): a(f"v_pk_add_f32 {v(PSR+2*i,2)}, {v(PSR+2*i,2)}, {v(PSR+2*i+2*m,2)}")
    a(f"v_mul_f32 v48, 0x3b000000, v{PSR}\nv_mul_f32 v49, 0x3b000000, v{PSR+1}\nv_fma_f32 v49, -v48, v48, v49\nv_max_f32 v49, 0, v49")
    a("v_cvt_pk_bf16_f32 v49, v49, v48\nv_and_b32 v48, 0xffff0000, v49\nv_lshlrev_b32 v49, 16, v49\nv_add_f32 v49, 0x3727c5ac, v49")
    a("v_cvt_pk_bf16_f32 v49, v49, v49\nv_lshlrev_b32 v49, 16, v49\nv_sqrt_f32 v49, v49\nv_cvt_pk_bf16_f32 v49, v49, v49\nv_lshlrev_b32 v49, 16, v49\nv_rcp_f32 v49, v49")
    MR = 104
    for e in range(2):
        a(f"v_mov_b32 v{MR+e}, v{48+e}\nv_mov_b32 v{MR+4+e}, v{48+e}")
    for e in range(2): a(f"v_permlane32_swap_b32 v{MR+e}, v{MR+4+e}")
    for e in range(2): a(f"v_mov_b32 v{MR+2+e}, v{MR+e}\nv_mov_b32 v{MR+6+e}, v{MR+4+e}")
    for e in range(2): a(f"v_permlane16_swap_b32 v{MR+e}, v{MR+2+e}\nv_permlane16_swap_b32 v{MR+4+e}, v{MR+6+e}")
    CS, TT = 136, 148
    for i in range(12):
        a(f"v_mov_b32_dpp v{CS+i}, v{CT+i} quad_perm:[0,0,2,2] row_mask:0xf bank_mask:0xf\nv_mov_b32_dpp v{TT+i}, v{CT+i} quad_perm:[1,1,3,3] row_mask:0xf bank_mask:0xf")
    HO = 160
    for t in range(3):
        for p in range(2):
            o = HO + 8 * t + 4 * p
            for rt in (2 * p, 2 * p + 1):
                for q in range(2):
                    d = v(A1 + 16 * t + 4 * rt + 2 * q, 2)
                    a(f"v_pk_fma_f32 {d}, {v(CS+4*t+2*q,2)}, {v(MR+2*rt,2)}, {d} op_sel:[0,0,0] op_sel_hi:[1,0,1] neg_lo:[0,1,0] neg_hi:[0,1,0]")
            for rt in (2 * p, 2 * p + 1):
                for q in range(2):
                    d = v(A1 + 16 * t + 4 * rt + 2 * q, 2)
                    a(f"v_pk_fma_f32 {d}, {d}, {v(MR+2*rt,2)}, {v(TT+4*t+2*q,2)} op_sel:[0,1,0] op_sel_hi:[1,1,1]")
            for rt in (2 * p, 2 * p + 1):
                for q in range(2):
                    s_ = A1 + 16 * t + 4 * rt + 2 * q
                    a(f"v_cvt_pk_bf16_f32 v{o+2*(rt&1)+q}, v{s_}, v{s_+1}")
            for q in range(4): a(f"v_pk_max_i16 v{o+q}, v{o+q}, 0")
            a(f"v_permlane32_swap_b32 v{o}, v{o+2}\nv_permlane32_swap_b32 v{o+1}, v{o+3}")
            a(f"buffer_store_dwordx4 {v(o,4)}, v{12+t}, {WS}, 0 offen offset:{2048*p} sc1", "hst")
    stamp("hpub")
    if stop == 4: return finish_kernel()
    GBR = [4, 28, 32, 36]
    a("s_mov_b32 s69, s67")
    gbl = [f"buffer_load_dwordx4 {v(GBR[i],4)}, v27, {WS}, s69 offen offset:{128*(i>>1) + 16*(i&1)} sc1" for i in range(4)]
    for l in gbl: a(l, "gb")
    HF = 64
    a(f"s_mul_i32 s66, {sW}, {11*4096}\ns_add_u32 s64, s64, s66")
    hl = []
    for p in range(4):
        a(f"s_add_u32 s66, {sW}, {p+1}\ns_and_b32 s66, s66, 3\ns_lshl_b32 s67, s66, 10\ns_add_u32 s67, s67, s64\nv_add_u32 v{8+p}, s67, v3")
        if p < 3: a(f"s_mul_i32 s66, s66, 12288\ns_add_u32 s66, s66, {L_R2 + 4096*p}\nv_add_u32 v{16+p}, s66, v3")
        hl.append([f"buffer_load_dwordx4 {v(HF+44*p+4*s_,4)}, v{8+p}, {WS}, {k4(s_) if s_ < 10 else 's65'} offen sc1" for s_ in range(11)])
    a(f"s_cmp_eq_u32 {sW}, 3\ns_cselect_b32 s65, {OOB}, {k4(10)}")
    a(f"s_mul_i32 s66, {sW}, 12288\ns_add_u32 s66, s66, {L_R2}\nv_add_u32 v19, s66, v3")
    for p in range(4):
        for l in hl[p]: a(l, f"h{p}")
    a(f"s_lshl_b32 s66, s44, 16\ns_lshl_b32 s67, {sW}, 14\ns_add_u32 s66, s66, s67\ns_lshl_b32 s67, s45, 7\ns_add_u32 s66, s66, s67")
    a("v_and_b32 v20, 15, v1\nv_lshlrev_b32 v20, 10, v20\nv_and_b32 v21, 48, v1\nv_add3_u32 v20, v20, v21, s66")
    gt = [g + o for g in GBR for o in (1, 3)]
    poll(gbl, [f"v_xor_b32 v21, {sTAG}, v{gt[0]}"] + [f"v_bitop3_b32 v21, v21, v{t}, {sTAG} bitop3:0xf6" for t in gt[1:]] + ["v_cmp_ne_u32 vcc, 0, v21"], "gb")
    A2 = 240
    def acc2(p, ct): return ar(176 + 16 * p + 4 * ct, 4) if p < 3 else v(A2 + 4 * ct, 4)
    for p in range(4):
        poll(hl[p], sent(range(HF + 44 * p, HF + 44 * p + 44), 21), f"h{p}")
        if p == 0: stamp("harr")
        n = 0
        for s_ in range(11):
            for ct in range(4):
                d = acc2(p, ct)
                a(f"v_mfma_f32_16x16x32_bf16 {d}, {W2fr(s_,ct)}, {v(HF+44*p+4*s_,4)}, {0 if s_ == 0 else d}")
                n += 1
                if p > 0 and n in (1, 3, 5, 7):
                    c2 = n >> 1; a(f"ds_write_b128 v{16+p-1}, {acc2(p-1,c2)} offset:{1024*c2}")
                if p == 3 and n == 14: a("s_waitcnt lgkmcnt(0)\ns_barrier")
                if p == 3 and 14 <= n < 26:
                    i = n - 14; a(f"ds_read_b128 {v(HF+4*i,4)}, v19 offset:{1024*i}", "r2")
                if p == 3 and n == 28: a.wl("r2")
                if p == 3 and 28 <= n < 44:
                    i = n - 28; a(f"v_add_f32 v{HF+i}, v{HF+i}, v{HF+16+i}\nv_add_f32 v{HF+i}, v{HF+i}, v{HF+32+i}")
    stamp("gemm2")
    T = HF + 16
    for ct in range(4):
        g0 = GBR[ct]
        a(f"v_lshlrev_b32 v{T+4*ct}, 16, v{g0}\nv_and_b32 v{T+4*ct+1}, 0xffff0000, v{g0}\nv_lshlrev_b32 v{T+4*ct+2}, 16, v{g0+2}\nv_and_b32 v{T+4*ct+3}, 0xffff0000, v{g0+2}")
    for i in range(8): a(f"v_lshlrev_b32 v{T+16+2*i}, 16, v{XR+i}\nv_and_b32 v{T+17+2*i}, 0xffff0000, v{XR+i}")
    for i in range(8): a(f"v_pk_add_f32 {v(HF+2*i,2)}, {v(HF+2*i,2)}, {v(A2+2*i,2)}")
    for i in range(8): a(f"v_pk_fma_f32 {v(HF+2*i,2)}, {v(HF+2*i,2)}, {v(T+2*i,2)}, {v(T+16+2*i,2)}")
    for hh in range(2):
        for q in range(4): a(f"v_cvt_pk_bf16_f32 v{48+4*hh+q}, v{HF+8*hh+2*q}, v{HF+8*hh+2*q+1}")
        a(f"global_store_dwordx4 v20, {v(48+4*hh,4)}, s[28:29] offset:{64*hh}")
    return finish_kernel()

if __name__ == "__main__":
    stop = int(sys.argv[1]) if len(sys.argv) > 1 else 99
    stamps = len(sys.argv) > 2 and sys.argv[2] == "1"
    out = sys.argv[3] if len(sys.argv) > 3 else "k.s"
    probe = sys.argv[4] if len(sys.argv) > 4 else None
    open(out, "w").write(gen(stop, stamps, probe=probe))
```

```python
import re
from asmgen import KN, HEADER, file_text

REG = re.compile(r"\b([vas])(\d+)\b|\b([vas])\[(\d+):(\d+)\]|\b(vcc|exec|m0)\b")
TRANS = ("v_exp_", "v_log_", "v_rcp_", "v_rsq_", "v_sqrt_", "v_sin_", "v_cos_")

def regs_of(op):
    out = set()
    for m in REG.finditer(op):
        if m.group(1): out.add((m.group(1), int(m.group(2))))
        elif m.group(3):
            for i in range(int(m.group(4)), int(m.group(5)) + 1): out.add((m.group(3), i))
        else: out.add((m.group(6), 0))
    return out

class Ins:
    def __init__(self, text):
        self.text = text
        t = text.split(";")[0].strip()
        self.label = t.endswith(":")
        self.directive = t.startswith(".")
        p = t.split(None, 1)
        self.mn = p[0] if p else ""
        rest = p[1] if len(p) > 1 else ""
        rest2 = re.sub(r"\b(op_sel|op_sel_hi|neg_lo|neg_hi|quad_perm):\[[^\]]*\]", "", rest)
        self.ops = [o.strip() for o in rest2.split(",")] if rest2.strip() else []
        mn = self.mn
        self.mfma = mn.startswith("v_mfma")
        self.valu = mn.startswith("v_") and not self.mfma
        self.trans = mn.startswith(TRANS)
        self.dot = mn.startswith("v_dot")
        self.dpp = "_dpp" in mn
        self.perml = mn.startswith("v_permlane")
        self.rdlane = mn.startswith(("v_readlane", "v_readfirstlane"))
        self.vmem = mn.startswith(("buffer_", "global_"))
        self.ds = mn.startswith("ds_")
        self.smem = mn.startswith(("s_load", "s_memtime", "s_memrealtime"))
        self.salu = mn.startswith("s_") and not self.smem
        R = [regs_of(o) for o in self.ops]
        d, u = set(), set()
        U = lambda L: set().union(*L) if L else set()
        self.store_data = set(); self.C = set(); self.AB = set()
        if self.label or self.directive or not mn: pass
        elif self.mfma:
            d = R[0]; self.AB = R[1] | R[2]; self.C = R[3]; u = self.AB | self.C
            self.passes = 8 if "32x32" in mn else 4
        elif self.valu:
            if self.perml or mn.startswith("v_swap"): d = R[0] | R[1]; u = set(d)
            elif mn.startswith(("v_add_co", "v_sub_co", "v_addc_co", "v_subb_co")): d = R[0] | R[1]; u = U(R[2:])
            elif mn.startswith("v_cmpx"): raise ValueError("no cmpx")
            else:
                d = R[0]; u = U(R[1:])
                if mn.startswith(("v_fmac", "v_dot2c", "v_writelane")) or self.dpp: u |= R[0]
            if self.dot: self.C = R[3] if len(R) > 3 else R[0]; self.AB = R[1] | R[2]
        elif self.vmem:
            if "_lds_" in mn or re.search(r"\blds\b", t): u = U(R) | {("m0", 0)}
            elif "wbl2" in mn: pass
            elif "load" in mn:
                d = R[0]; u = U(R[1:])
                if "d16" in mn: u |= R[0]
            elif mn.startswith("buffer_store"): u = U(R); self.store_data = R[0]
            elif mn.startswith("global_store"): u = U(R); self.store_data = R[1]
            else: raise ValueError(mn)
        elif self.ds:
            if mn.startswith(("ds_read", "ds_bpermute")): d = R[0]; u = U(R[1:])
            else: u = U(R)
            if "addtid" in mn: u.add(("m0", 0))
        elif self.smem: d = R[0]; u = U(R[1:])
        elif self.salu:
            if mn.startswith(("s_cmp", "s_cbranch", "s_branch", "s_waitcnt", "s_nop", "s_barrier", "s_sleep", "s_endpgm", "s_setprio", "s_bitcmp")): u = U(R)
            else: d = R[0]; u = U(R[1:])
        self.d, self.u = d, u
        self.wide = self.vmem and "store" in mn and mn.endswith(("x3", "x4"))
    def states(self):
        if self.label or self.directive: return 0
        if self.mn == "s_nop": return int(self.ops[0]) + 1
        return 1

isv = lambda s: {r for r in s if r[0] in "va"}
iss = lambda s: {r for r in s if r[0] in ("s", "vcc")}

def need(p, c):
    n = 0
    if p.valu:
        pv = isv(p.d); ps = iss(p.d)
        if c.mfma and pv & c.u: n = max(n, 2)
        if c.dpp and pv & c.u: n = max(n, 2)
        if c.perml and pv & c.u: n = max(n, 2)
        if c.rdlane and pv & c.u: n = max(n, 1)
        if p.trans and (pv & c.u): n = max(n, 1)
        if p.dot and pv & (c.u | c.d):
            if not (c.mn == p.mn and not (pv & c.AB)): n = max(n, 3)
        if ps & c.u:
            if c.vmem: n = max(n, 5)
            elif c.valu: n = max(n, 4 if c.mn.startswith(("v_readlane", "v_writelane")) else 2)
    if p.mfma:
        big = 12 if p.passes == 8 else 8
        if c.mfma:
            if p.d & c.AB: n = max(n, big)
            if p.d & c.C and not (p.d == c.C and p.passes == c.passes): n = max(n, big - 2)
            if p.d & c.d and not (p.d == c.d): n = max(n, big)
        elif (c.valu or c.vmem or c.ds) and p.d & (c.u | c.d): n = max(n, big)
        if c.valu and p.C & c.d: n = max(n, 7 if p.passes == 8 else 3)
    if p.wide and p.store_data & c.d: n = max(n, 2)
    if p.salu and ("m0", 0) in p.d and ("m0", 0) in c.u and (c.ds or c.vmem): n = max(n, 1)
    return n

class Asm:
    def __init__(self):
        self.L = []; self.nlab = 0; self.vq = []; self.lq = []; self.vdone = 0; self.ldone = 0
    def __call__(self, s, tag=None):
        for l in s.strip("\n").split("\n"):
            l = l.strip()
            if not l: continue
            i = Ins(l); self.L.append(i)
            if i.vmem and '; skip' not in l: self.vq.append(tag)
            if i.ds: self.lq.append(tag)
            if i.mn == "s_waitcnt":
                m = re.search(r"vmcnt\((\d+)\)", l)
                if m: self.vdone = max(self.vdone, len(self.vq) - int(m.group(1)))
                m = re.search(r"lgkmcnt\((\d+)\)", l)
                if m: self.ldone = max(self.ldone, len(self.lq) - int(m.group(1)))
    def label(self, p="L"):
        self.nlab += 1; return f"{p}_{self.nlab}"
    def _cnt(self, q, tag):
        idx = max(i for i, t in enumerate(q) if t == tag)
        return len(q) - 1 - idx
    def wvm(self, tag): self(f"s_waitcnt vmcnt({min(63, self._cnt(self.vq, tag))})")
    def wl(self, tag): self(f"s_waitcnt lgkmcnt({min(15, self._cnt(self.lq, tag))})")
    def nv(self, tag):
        if len(self.vq) - self._cnt(self.vq, tag) > self.vdone: self.wvm(tag)
    def nl(self, tag):
        if len(self.lq) - self._cnt(self.lq, tag) > self.ldone: self.wl(tag)
    def finish(self, verbose=True):
        out = []; npad = 0
        vq, lq, sq = [], [], []
        for c in self.L:
            if not (c.label or c.directive):
                dist = 0; req = 0
                for p in reversed(out):
                    if dist >= 12: break
                    if not (p.label or p.directive): req = max(req, need(p, c) - dist)
                    dist += p.states()
                if req > 0:
                    out.append(Ins(f"s_nop {req-1}")); npad += req
                if c.mn == "s_waitcnt":
                    m = re.search(r"vmcnt\((\d+)\)", c.text)
                    if m:
                        n = int(m.group(1)); vq = vq[len(vq) - n:] if n < len(vq) else vq
                        if n == 0: vq = []
                    m = re.search(r"lgkmcnt\((\d+)\)", c.text)
                    if m:
                        n = int(m.group(1)); lq = lq[len(lq) - n:] if n < len(lq) else lq
                        if n == 0: lq = []; sq = []
                elif c.mn in ("s_endpgm", "s_branch"): vq, lq, sq = [], [], []
                else:
                    for q in (vq, lq, sq):
                        for p in q:
                            if p.d & (c.u | c.d) and "nochk" not in c.text:
                                raise ValueError(f"pending load {p.text!r} touched by {c.text!r}")
                    if c.vmem and '; skip' not in c.text: vq.append(c)
                    if c.ds: lq.append(c)
                    if c.smem: sq.append(c)
            out.append(c)
        if verbose: print("instructions", sum(1 for i in out if not (i.label or i.directive)), "pad states", npad)
        return "".join((i.text if (i.label or i.directive) else "    " + i.text) + "\n" for i in out)

def kernel_text(name, body, vgpr, accum, sgpr=102):
    t = f".globl {name}\n.p2align 8\n.type {name},@function\n{name}:\n{body}"
    d = f""".amdhsa_kernel {name}
  .amdhsa_next_free_vgpr {vgpr}
  .amdhsa_next_free_sgpr {sgpr}
  .amdhsa_accum_offset {accum}
  .amdhsa_group_segment_fixed_size 0
  .amdhsa_kernarg_size 120
  .amdhsa_user_sgpr_count 2
  .amdhsa_user_sgpr_kernarg_segment_ptr 1
  .amdhsa_system_sgpr_workgroup_id_x 1
.end_amdhsa_kernel
"""
    return t, d
```

```python
import sys
from asm2 import *

EPOCH = 0; STATS = 0x1000; FLAGS = 0x6000; MODF = 0x8000; MODP = 0x10000; PS = 0x40000
W1T = 0x100000; W2T = 0x280000; U = 0x400000; H = 0x800000; XT = 0xE00000
HG = 43 * 4096
OOB = 0x9000000; DBG = 0x2000000; STAMP_OFF = 0x8000000
TROW = 528; TCH = 60 * TROW
L_U = 0; L_K = 65536; KCP = 4160; KCH = 2 * KCP
L_H = 82176; HPAR = 2304; HCH = 2 * HPAR
L_RED = 91392; RW = 10240
L_MOD = 132352; L_SI = L_MOD + 3072; L_R2 = 65536
LDS_BYTES = L_SI + 256
sW, sR, sTAG, sLDT, sD, sSPIN = "s3", "s40", "s41", "s42", "s43", "s48"
WS = "s[32:35]"; WJ = "s[36:39]"
def k4(k): return "0" if k == 0 else f"s{48 + k}"
GEXP = list(range(9)) + [256, 258, 260, 262, 264, 512, 516, 520, 768, 772, 776, 1024, 1032, 1280, 1288, 1536, 1544, 1792, 1800]

import os
ONLY = set(os.environ.get("ST", "start,sync1,hgen,u0pub,u1pub,u0arr,g1a,u1arr,h0pub,g1b,h1pub,h0arr,g2a,h1arr,g2b,end").split(","))
OPT = dict(pW1=0, pB=96, pM=128, pP=160, pW2=200, sw=8, nw1c=24, ncs=8, u1ks=4, ps0ks=10, ps1ks=10, h0ks=12, h1n=60, ord=0, w2a=24)
for kv in os.environ.get("OPT", "").split(","):
    if kv: OPT[kv.split("=")[0]] = int(kv.split("=")[1])
def v(i, n=1): return f"v{i}" if n == 1 else f"v[{i}:{i+n-1}]"
def ar(i, n=1): return f"a{i}" if n == 1 else f"a[{i}:{i+n-1}]"

def page_delta(pg, e):
    if pg == 0: return e
    if pg == 1: return [0, 0, 2, 4, 4, 4, 6, 8, 8][e]
    if pg < 4: return [0, 0, 0, 4, 4, 4, 8, 8, 8][e]
    return [0, 0, 0, 0, 0, 8, 8, 8, 8][e]
def gtable():
    t = []
    for wp in range(2):
        for rho in range(32):
            i, h, r = rho >> 3, (rho >> 2) & 1, rho & 3
            ri = 4 * i + r; pg0 = 4 * wp + 2 * h
            if ri < 8: ex = 256 * pg0 + page_delta(pg0, ri)
            elif ri == 9: ex = 256 * pg0 + 8
            else: ex = 256 * (pg0 + 1) + page_delta(pg0 + 1, ri - 8)
            t.append((32 + GEXP.index(ex)) * TROW)
    return t

def rr(a, streams):
    while any(streams):
        for s in streams:
            if s: a(s.pop(0))

def merge(streams):
    out = []; streams = [list(s) for s in streams]
    while any(streams):
        for s in streams:
            if s: out.append(s.pop(0))
    return out

def gen(stop=99, stamps=False, probe=None):
    a = Asm(); tail = []
    nst = [0]; names = []
    def stamp(name):
        if stamps and name in ONLY:
            i = nst[0]; nst[0] += 1; assert i < 16; names.append(name)
            a(f"{'s_memtime' if stamps == 2 else 's_memrealtime'} s[{70+2*i}:{71+2*i}] ; stamp {name}")
    def poll(loads, check, tag):
        lr, lb = a.label("L_retry"), a.label("L_back")
        a.wvm(tag)
        for c in check: a(c)
        a(f"s_cbranch_vccnz {lr}\n{lb}:")
        tail.append((lr, lb, loads, check))
    def finish_kernel():
        if stamps:
            a("s_waitcnt vmcnt(0) lgkmcnt(0)")
            stamp("end")
            a(f"s_waitcnt lgkmcnt(0)\ns_lshl_b32 s44, {sR}, 2\ns_add_u32 s44, s44, {sW}\ns_lshl_b32 s44, s44, 7\ns_add_u32 s44, s44, {STAMP_OFF}\nv_mov_b32 v1, 0\ns_mov_b64 exec, 1")
            for i in range(nst[0]): a(f"v_mov_b32 v2, s{70+2*i}\nbuffer_store_dword v2, v1, {WS}, s44 offen offset:{4*i}")
            a(f"v_mov_b32 v2, {sSPIN}\nbuffer_store_dword v2, v1, {WS}, s44 offen offset:124")
        if probe is not None:
            i = names.index(probe)
            a(f"s_add_u32 s44, s{70+2*i}, 4500\ns_mov_b32 s45, 20000\nL_probe:\ns_memrealtime s[46:47]\ns_waitcnt lgkmcnt(0)\ns_sub_u32 s45, s45, 1\ns_cbranch_scc1 L_end\ns_sub_u32 s46, s46, s44\ns_cmp_lt_i32 s46, 0\ns_cbranch_scc1 L_probe")
        if stamps: print("stamps:", names)
        a("L_end:\ns_endpgm")
        for lr, lb, loads, check in tail:
            a(f"{lr}:\ns_cmp_eq_u32 {sSPIN}, 0\ns_cbranch_scc1 {lb}\ns_sub_u32 {sSPIN}, {sSPIN}, 1\ns_nop 1")
            for l in loads: a(l)
            a("s_waitcnt vmcnt(0)")
            for c in check: a(c)
            a(f"s_cbranch_vccnz {lr}\ns_branch {lb}")
        a(".p2align 6\n.type L_tab,@object\nL_tab:")
        a(".short " + ", ".join(str(x) for x in gtable()))
        a("L_tabend:")
        k = kernel_text(KN + "_kernel", a.finish(), 512, 256)
        return file_text([k], [f"grid=(256,1,1) block=(256,1,1) lds={LDS_BYTES}"])
    def dump_lds(off, nbytes):
        a("s_waitcnt vmcnt(0) lgkmcnt(0)\ns_barrier")
        a(f"v_lshlrev_b32 v2, 4, v0\nv_add_u32 v3, {off}, v2\ns_lshl_b32 s44, {sR}, 18\ns_add_u32 s44, s44, {DBG}")
        for i in range((nbytes + 4095) // 4096):
            a(f"ds_read_b128 v[4:7], v3\nv_add_u32 v3, 4096, v3\ns_waitcnt lgkmcnt(0)\nbuffer_store_dwordx4 v[4:7], v2, {WS}, s44 offen\ns_add_u32 s44, s44, 4096\ns_waitcnt vmcnt(0)")

    def run(items):
        for it in items:
            if callable(it): it()
            elif isinstance(it, tuple): a(*it)
            else: a(it)
    def tagchk(regs, acc):
        return [f"v_xor_b32 v{acc}, {sTAG}, v{regs[0]}"] + [f"v_bitop3_b32 v{acc}, v{acc}, v{t}, {sTAG} bitop3:0xf6" for t in regs[1:]] + [f"v_cmp_ne_u32 vcc, 0, v{acc}"]
    def sent(regs, acc):
        L = []; r = list(regs)
        L.append(f"v_max3_u32 v{acc}, v{r[0]}, v{r[1]}, v{r[2]}"); r = r[3:]
        while len(r) >= 2: L.append(f"v_max3_u32 v{acc}, v{acc}, v{r[0]}, v{r[1]}"); r = r[2:]
        if r: L.append(f"v_max_u32 v{acc}, v{acc}, v{r[0]}")
        return L + [f"v_cmp_eq_u32 vcc, -1, v{acc}"]
    sX, sI = "s30", "s31"
    stamp("start")
    a(f"s_lshr_b32 {sI}, s2, 3\ns_cmp_ge_u32 {sI}, 32\ns_cbranch_scc1 L_end")
    a("s_load_dwordx16 s[4:19], s[0:1], 0\ns_load_dwordx8 s[20:27], s[0:1], 64\ns_load_dwordx2 s[32:33], s[0:1], 112")
    a("s_getpc_b64 s[46:47]\nL_pc:")
    a(f"s_lshl_b32 s44, {sI}, 10\nv_lshl_add_u32 v2, v0, 2, s44\nv_min_u32 v2, L_tabend-L_pc-4, v2")
    a("global_load_dword v100, v2, s[46:47]", "cp")
    a(f"v_lshrrev_b32 v16, 6, v0\nv_and_b32 v1, 63, v0\ns_and_b32 {sX}, s2, 7\nv_readfirstlane_b32 {sW}, v16\nv_lshlrev_b32 v3, 4, v1")
    a(f"s_lshl_b32 s44, {sX}, 5\ns_add_u32 {sR}, s44, {sI}\ns_lshl_b32 s44, {sR}, 9\nv_lshl_add_u32 v46, v0, 1, s44")
    a(f"s_lshl_b32 s44, {sI}, 5\ns_add_u32 s44, s44, {sX}\ns_lshl_b32 s44, s44, 11\nv_lshl_add_u32 v47, v16, 14, v3\nv_add_u32 v47, s44, v47\ns_lshl_b32 s44, {sR}, 2")
    a("s_waitcnt lgkmcnt(0)")
    stamp("karg")
    a(f"s_load_dword {sLDT}, s[14:15], s44")
    for i in range(4): a(f"global_load_ushort v{12+i}, v46, s[{6+2*i}:{7+2*i}] nt", "kp")
    a("global_load_dwordx4 v[4:7], v47, s[4:5] nt\nglobal_load_dwordx4 v[8:11], v47, s[4:5] offset:1024 nt", "xr")
    a(f"s_load_dword {sTAG}, s[32:33], {EPOCH}\ns_load_dword {sD}, s[16:17], s44\ns_load_dwordx2 s[28:29], s[0:1], 96")
    a(f"s_mul_i32 s45, {sW}, {RW}\ns_add_u32 s45, s45, {L_RED}\ns_mov_b32 m0, s45")
    a(f"s_lshr_b32 s44, {sI}, 2\ns_mul_i32 s44, s44, {(1<<17)-(1<<14)}\ns_lshr_b32 s64, {sW}, 1\ns_mul_i32 s64, s64, {(1<<20)-(1<<12)}\ns_add_u32 s44, s44, s64")
    a(f"s_lshl1_add_u32 s64, {sI}, {sW}\ns_lshl4_add_u32 s64, s64, {sX}\ns_lshl_b32 s64, s64, 7\ns_add_u32 s44, s44, s64")
    a("v_lshrrev_b32 v17, 3, v1\nv_xor_b32 v120, v1, v17\nv_and_b32 v120, 7, v120\nv_lshl_add_u32 v120, v120, 4, s44\nv_lshl_add_u32 v120, v17, 14, v120")
    a("global_load_lds_dwordx4 v120, s[4:5] nt\nglobal_load_lds_dwordx4 v120, s[4:5] offset:1024 nt", "xt")
    a(f"s_mul_i32 s66, {sR}, 3\ns_add_u32 s66, s66, {sW}\ns_cmp_eq_u32 {sW}, 3\ns_cselect_b32 s66, 1000, s66\ns_mul_i32 s67, s66, 1525\ns_lshr_b32 s67, s67, 16")
    a(f"s_mul_i32 s64, s67, 85312\ns_lshl_b32 s65, s66, 6\ns_add_u32 s64, s64, s65\ns_add_u32 m0, s45, 2048")
    a("s_mov_b32 s36, s20\ns_mov_b32 s37, s21\ns_mov_b32 s38, 1409024\ns_mov_b32 s39, 0x20000")
    a("v_lshrrev_b32 v122, 2, v1\nv_and_b32 v121, 48, v3\ns_movk_i32 s65, 2752\nv_mad_u32_u24 v123, v122, s65, v121")
    a(f"buffer_load_dwordx4 v123, {WJ}, s64 offen nt lds\ns_add_u32 s64, s64, {16*2752-1024}\nbuffer_load_dwordx4 v123, {WJ}, s64 offen offset:1024 nt lds", "w1j")
    a(f"s_and_b32 s64, {sI}, 3\ns_lshl_b32 s65, s64, 8\nv_and_b32 v124, 127, v0\nv_lshl_add_u32 v125, v124, 1, s65")
    a("global_load_ushort v19, v125, s[24:25]", "c")
    a(f"s_lshl2_add_u32 s64, s64, {sW}\ns_mul_i32 s64, s64, {32*6144}\ns_lshr_b32 s65, {sI}, 2\ns_lshl3_add_u32 s65, s65, {sX}\ns_lshl_b32 s65, s65, 7\ns_add_u32 s64, s64, s65")
    a(f"s_cmp_lt_u32 {sI}, 24\ns_cselect_b32 s64, s64, {OOB}\ns_mov_b32 s36, s26\ns_mov_b32 s37, s27\ns_mov_b32 s38, 3145728\ns_add_u32 m0, s45, 6144")
    a("v_and_b32 v123, 6, v17\nv_xor_b32 v123, v123, v1\nv_and_b32 v123, 7, v123\nv_lshlrev_b32 v123, 4, v123\ns_movk_i32 s65, 6144\nv_mad_u32_u24 v123, v17, s65, v123")
    for it in range(4):
        a(f"buffer_load_dwordx4 v123, {WJ}, s64 offen offset:{1024*it} nt lds", "wm")
        if it < 3: a(f"s_add_u32 s64, s64, {49152-1024}")
    a("v_and_b32 v18, 31, v0\nv_and_b32 v16, 64, v0\nv_lshl_add_u32 v18, v18, 1, v16\nv_add_u32 v18, L_tab-L_pc, v18")
    a("global_load_ushort v18, v18, s[46:47]", "tab")
    a(f"s_lshr_b32 s68, s66, 4\ns_and_b32 s69, s66, 15\ns_lshl_b32 s64, s68, 15\ns_lshl_b32 s65, s69, 6\ns_add_u32 s64, s64, s65\ns_add_u32 m0, s45, 4096")
    a("s_mov_b32 s36, s22\ns_mov_b32 s37, s23\ns_mov_b32 s38, 1409024\nv_lshl_add_u32 v122, v122, 10, v121")
    a(f"buffer_load_dwordx4 v122, {WJ}, s64 offen nt lds\ns_add_u32 s64, s64, {16384-1024}\nbuffer_load_dwordx4 v122, {WJ}, s64 offen offset:1024 nt lds", "w2j")
    a("s_mov_b32 s34, 0x9000000\ns_mov_b32 s35, 0x20000")
    a(f"v_lshrrev_b32 v2, 3, v0\nv_lshlrev_b32 v2, 15, v2\nv_and_b32 v16, 0x70, v3\ns_lshl_b32 s44, {sR}, 7\ns_add_u32 s44, s44, {U}\nv_add3_u32 v2, v2, v16, s44")
    for i in range(4): a(f"v_mov_b32 v{72+i}, -1")
    a(f"s_mov_b32 s44, {1<<20}")
    a(f"buffer_store_dwordx4 v[72:75], v2, {WS}, 0 offen sc1\nbuffer_store_dwordx4 v[72:75], v2, {WS}, s44 offen sc1", "pf")
    a(f"s_lshr_b32 s44, {sR}, 3\ns_lshl_b32 s44, s44, 12\ns_lshl1_add_u32 s23, {sR}, 0\ns_lshr_b32 s64, {sW}, 1\ns_add_u32 s23, s23, s64\ns_lshl_b32 s23, s23, 8\ns_add_u32 s23, s23, s44")
    a(f"s_and_b32 s64, {sW}, 1\ns_lshl3_add_u32 s23, s64, s23\ns_add_u32 s23, s23, {PS}")
    a("v_and_b32 v121, 0xf0, v3\nv_and_b32 v122, 16, v1\nv_lshl_add_u32 v121, v122, 8, v121\ns_mov_b32 exec_hi, 0")
    a(f"buffer_store_dwordx2 v[72:73], v121, {WS}, s23 offen sc1", "pf")
    a("s_mov_b32 exec_hi, -1")
    for k in range(1, 16): a(f"s_movk_i32 {k4(k)}, {4096*k}" if k < 8 else f"s_mov_b32 {k4(k)}, {4096*k}")
    a(f"s_mov_b32 {sSPIN}, 100000")
    a(f"s_mul_i32 s20, s67, {(1024 - 43*32768) & 0xffffffff}\ns_lshl_b32 s64, s66, 15\ns_add_u32 s20, s20, s64\ns_add_u32 s20, s20, {W1T}")
    a(f"s_lshr_b32 s64, s69, 1\ns_mul_i32 s64, s64, 43\ns_add_u32 s64, s64, s68\ns_and_b32 s65, s69, 1\ns_lshl1_add_u32 s64, s64, s65\ns_lshl_b32 s64, s64, 11\ns_add_u32 s21, s64, {W2T}")
    a(f"s_cmp_lt_u32 s66, 688\ns_cselect_b32 s20, s20, {OOB}\ns_cselect_b32 s21, s21, {OOB}")
    a(f"s_lshr_b32 s64, {sI}, 4\ns_and_b32 s65, {sX}, 1\ns_lshl1_add_u32 s64, s64, s65\ns_bfe_u32 s65, {sI}, 0x20002\ns_lshl2_add_u32 s64, s64, s65\ns_lshr_b32 s65, {sX}, 1\ns_lshl2_add_u32 s64, s64, s65")
    a(f"s_and_b32 s65, {sI}, 3\ns_lshl2_add_u32 s64, s64, s65\ns_lshl2_add_u32 s64, s64, {sW}\ns_lshl4_add_u32 s22, s64, {k4(1)}")
    for i in range(4): a(f"v_mov_b32 v{76+i}, 0")
    a(f"v_lshrrev_b32 v80, 4, v1\nv_and_b32 v81, 15, v1\nv_mul_u32_u24 v82, {HPAR}, v80\nv_lshl_add_u32 v82, v81, 4, v82\nv_add_u32 v82, {L_H}, v82")
    a(f"v_mul_u32_u24 v83, {KCP}, v80\nv_and_b32 v84, 1, v1\nv_lshl_add_u32 v83, v84, 4, v83\nv_add_u32 v83, {L_K + 4096}, v83")
    a("ds_write_b128 v82, v[76:79]\nds_write_b128 v83, v[76:79]")
    a("v_and_b32 v82, 16, v1\nv_and_b32 v83, 32, v1\nv_lshl_add_u32 v46, v81, 4, s45\nv_lshl_add_u32 v46, v82, 5, v46\nv_lshl_add_u32 v46, v83, 3, v46")
    a(f"v_bfe_u32 v47, v1, 3, 2\nv_xor_b32 v47, {sW}, v47\nv_lshlrev_b32 v47, 5, v47\nv_lshl_add_u32 v47, v83, 6, v47\nv_and_b32 v85, 28, v1\nv_lshl_add_u32 v47, v85, 5, v47\nv_and_b32 v85, 3, v1\nv_lshl_add_u32 v47, v85, 3, v47\nv_add_u32 v47, {L_RED + 6144}, v47")
    a(f"v_and_b32 v85, 7, v1\nv_lshrrev_b32 v86, 5, v1\nv_lshl_add_u32 v86, {sW}, 1, v86\nv_xor_b32 v86, v86, v85\nv_lshlrev_b32 v86, 4, v86\nv_lshl_add_u32 v86, v85, 7, v86\nv_and_b32 v85, 3, v17\nv_lshl_add_u32 v86, v85, 2, v86\nv_add_u32 v120, {L_RED}, v86")
    a(f"v_lshrrev_b32 v85, 1, v124\nv_xor_b32 v85, v85, v124\nv_bfe_u32 v85, v85, 2, 1\nv_mul_u32_u24 v85, 12, v85\nv_xor_b32 v124, v124, v85\nv_lshlrev_b32 v124, 1, v124\nv_add_u32 v124, {L_SI}, v124")
    a(f"s_lshl2_add_u32 s64, {sX}, {sW}\ns_mul_i32 s64, s64, {8*12288}\ns_and_b32 s65, {sI}, 3\ns_bfe_u32 s44, {sI}, 0x10002\ns_lshl1_add_u32 s65, s65, s44\ns_and_b32 s44, {sI}, 24\ns_add_u32 s65, s65, s44\ns_lshl_b32 s65, s65, 7\ns_add_u32 s64, s64, s65\ns_add_u32 s64, s64, {XT}")
    a("v_mul_u32_u24 v125, 12288, v17\nv_add3_u32 v125, v125, v16, s64")
    a(f"v_lshl_add_u32 v126, v80, 1, v84\nv_lshlrev_b32 v126, 4, v126\nv_lshlrev_b32 v127, 4, v80\nv_add_u32 v127, {L_SI}, v127")
    a(f"s_mul_i32 s24, {sX}, 12288\ns_add_u32 s24, s24, {MODP}\ns_lshl2_add_u32 s64, {sI}, {sW}\ns_lshl_b32 s64, s64, 7\ns_add_u32 s25, s24, s64\ns_cmp_lt_u32 {sI}, 24\ns_cselect_b32 s25, s25, {OOB}\ns_lshl4_add_u32 s24, {sI}, s24")
    a(f"s_waitcnt lgkmcnt(0)\ns_mul_i32 {sTAG}, {sTAG}, 0x9e3779b5\ns_add_u32 {sTAG}, {sTAG}, 0x7f4a7c15")
    a(f"s_lshl_b32 s44, {sLDT}, 16\ns_and_b32 s45, {sLDT}, 0xffff0000\ns_cmp_lt_u32 {sW}, 2\ns_cselect_b32 s44, s44, s45")
    a(f"s_lshl_b32 s46, {sD}, 16\ns_and_b32 s45, {sD}, 0xffff0000\ns_cmp_lt_u32 {sW}, 2\ns_cselect_b32 {sD}, s46, s45")
    a(f"v_mov_b32 v16, 0x3fb8aa3b\nv_mul_f32 v17, s44, v16\nv_mov_b32 v95, {sTAG}\nv_exp_f32 v17, v17")
    for r_ in (51, 55, 58): a(f"v_mov_b32 v{r_}, {sTAG}")
    a(f"s_lshr_b32 s44, {sW}, 1\ns_mul_i32 s44, s44, {TCH}\ns_and_b32 s45, {sW}, 1\ns_lshl_b32 s46, s45, 8\ns_add_u32 m0, s44, s46")
    a("s_mov_b32 s64, 0x3f803f80\ns_mov_b32 s65, 0x3b000000")
    a.wvm("kp")
    stamp("kp")
    for i in range(4): a(f"v_lshlrev_b32 v{12+i}, 16, v{12+i}")
    a("v_mul_f32 v12, v16, v12\nv_exp_f32 v12, v12\nv_cvt_pk_bf16_f32 v17, v17, v12")
    a("v_and_b32 v12, 0xffff0000, v17\nv_lshlrev_b32 v17, 16, v17")
    a("v_mul_f32 v12, v12, v17\nv_mul_f32 v13, v13, v17\nv_add_f32 v17, v17, v17")
    a("v_mul_f32 v12, 0xbfb8aa3b, v12\nv_mul_f32 v13, 0.15915494, v13")
    Z1, Z8, Z16, Z256, G0 = 20, 22, 24, 26, 28
    a(f"v_mul_f32 v{G0}, v14, v17\nv_mul_f32 v{G0+1}, v15, -v17")
    st = []
    for i, (pc, z, cj) in enumerate((("1.0", Z1, 1), ("0x41000000", Z8, 0), ("0x41800000", Z16, 0), ("0x43800000", Z256, 1))):
        t = 104 + 2 * i
        st.append([f"v_mul_f32 v{t}, {pc}, v12", f"v_mul_f32 v{t+1}, {pc}, v13", f"v_exp_f32 v{t}, v{t}", f"v_fract_f32 v{t+1}, v{t+1}",
                   f"v_cos_f32 v{z}, v{t+1}", f"v_sin_f32 v{z+1}, v{t+1}", f"v_mul_f32 v{z}, v{z}, v{t}",
                   f"v_mul_f32 v{z+1}, v{z+1}, {'-' if cj else ''}v{t}"])
    run(merge(st))
    def cmul(d, x, m, t):
        return [f"v_pk_mul_f32 {v(t,2)}, {v(x,2)}, {v(m,2)} op_sel:[0,0] op_sel_hi:[0,1]",
                f"v_pk_fma_f32 {v(d,2)}, {v(x,2)}, {v(m,2)}, {v(t,2)} op_sel:[1,1,0] op_sel_hi:[1,0,1] neg_lo:[0,1,0]"]
    def put(x, t, row): return [f"v_cvt_pk_bf16_f32 v{t}, v{x}, v{x+1}", f"ds_write_addtid_b32 v{t} offset:{row*TROW}"]
    grow = lambda e: 32 + GEXP.index(e)
    sE = ["v_mov_b32 v112, 0x3f80", "ds_write_addtid_b32 v112 offset:0"] + put(Z16, 113, 2)
    src = Z16
    for f in range(4, 32, 2): sE += cmul(30, src, Z16, 104) + put(30, 112 + (f >> 1 & 1), f); src = 30
    sO = put(Z8, 114, 1); src = Z8
    for f in range(3, 32, 2): sO += cmul(32, src, Z16, 106) + put(32, 114 + (f >> 1 & 1), f); src = 32
    keep = {2: 34, 4: 36, 6: 38, 8: 40}
    sXx = []; src = G0
    for e in range(1, 9):
        d = keep.get(e, 42); sXx += cmul(d, src, Z1, 108) + put(d, 116 + (e & 1), grow(e)); src = d
    for k in range(1, 8): sXx += cmul(40, 40, Z256, 108) + put(40, 116 + (k & 1), grow(256 * k + 8))
    sY = put(G0, 118, grow(0)); src = G0
    for k in range(1, 8): sY += cmul(44, src, Z256, 110) + put(44, 118 + (k & 1), grow(256 * k)); src = 44
    sY += cmul(34, 34, Z256, 110) + put(34, 118, grow(258)) + cmul(38, 38, Z256, 110) + put(38, 119, grow(262))
    for k in range(1, 4): sY += cmul(36, 36, Z256, 110) + put(36, 118 + (k & 1 ^ 1), grow(256 * k + 4))
    CH = merge([sE, sO, sXx, sY])
    a.wvm("xr")
    stamp("xrows")
    for i in range(4):
        for (d, x, y) in ((88, 4 + i, None), (89, 4 + i, 4 + i), (90, 8 + i, None), (91, 8 + i, 8 + i)):
            a(f"v_dot2_f32_bf16 v{d}, v{x}, {'s64' if y is None else v(y)}, {0 if i == 0 else v(d)}")
    S = ["v_permlane32_swap_b32 v88, v90\nv_permlane32_swap_b32 v89, v91\nv_add_f32 v88, v88, v90\nv_add_f32 v89, v89, v91",
         "v_permlane16_swap_b32 v88, v89\nv_add_f32 v88, v88, v89"]
    S += [f"v_add_f32_dpp v88, v88, v88 row_ror:{sh} row_mask:0xf bank_mask:0xf" for sh in (8, 4, 2)]
    S += ["v_add_f32_dpp v88, v88, v88 row_ror:1 row_mask:0xf bank_mask:0xf\nv_mul_f32 v88, s65, v88\nv_mov_b32 v89, v88",
          "v_permlane16_swap_b32 v88, v89\nv_fma_f32 v89, -v88, v88, v89\nv_max_f32 v89, 0, v89\nv_mov_b32 v90, v88\n"
          "v_cvt_pk_bf16_f32 v89, v89, v89\nv_lshlrev_b32 v89, 16, v89\nv_add_f32 v89, 0x3727c5ac, v89\nv_permlane32_swap_b32 v88, v90\n"
          "v_cvt_pk_bf16_f32 v89, v89, v89\nv_lshlrev_b32 v89, 16, v89\nv_sqrt_f32 v89, v89\nv_cvt_pk_bf16_f32 v94, v88, v90\n"
          "v_cvt_pk_bf16_f32 v89, v89, v89\nv_lshlrev_b32 v89, 16, v89\nv_rcp_f32 v92, v89\nv_rcp_f32 v93, v89",
          "v_permlane32_swap_b32 v92, v93\ns_mov_b64 exec, 1"]
    for s_ in S:
        run(CH[:2]); CH = CH[2:]
        a(s_)
    a(f"buffer_store_dwordx4 v[92:95], v76, {WS}, s22 offen sc1", "st")
    a("s_mov_b64 exec, -1")
    stamp("stats")
    a.wvm("xt")
    a("s_barrier")
    so = lambda s_: 40 * (s_ >> 1) + 4 * (s_ & 1)
    for k in range(3):
        a(f"ds_read2st64_b32 {v(48+4*k,2)}, v120 offset0:{so(3*k)} offset1:{so(3*k+1)}", f"x{k}")
        if k < 2: a(f"ds_read_b32 v{50+4*k}, v120 offset:{256*so(3*k+2)}", f"x{k}")
    ins = {}
    def at(p, *items): ins.setdefault(min(p, len(CH)), []).extend(items)
    at(8, *[x for k in range(3) for x in (lambda k=k: a.nl(f"x{k}"), (f"buffer_store_dwordx4 {v(48+4*k,4)}, v125, {WS}, {k4(k)} offen sc1", "xst"))], lambda: stamp("xtpub"))
    def wjob(p, nm, off, sd, step):
        at(p, lambda: a.wvm(nm + "j"), *[(f"ds_read_b64_tr_b16 {v(60+4*e+2*h,2)}, v46 offset:{off + 1024*h + 8*e}", nm + "t") for e in range(2) for h in range(2)])
        at(p + 10, lambda: a.nl(nm + "t"), (f"buffer_store_dwordx4 v[60:63], v3, {WS}, {sd} offen sc1\ns_add_u32 {sd}, {sd}, {step}\nbuffer_store_dwordx4 v[64:67], v3, {WS}, {sd} offen sc1", nm + "s"), lambda: stamp(nm + "pub"))
    wjob(8 + OPT["pW1"], "w1", 2048, "s20", 16384)
    p = 20 + OPT["pW1"]
    at(p, lambda: a.wvm("c"), "v_lshlrev_b32 v19, 16, v19\nv_mul_f32 v88, 0xbfb8aa3b, v19\nv_exp_f32 v88, v88")
    at(p + 1, "v_add_f32 v88, 1.0, v88\nv_rcp_f32 v88, v88")
    at(p + 2, "v_mul_f32 v88, v88, v19\nv_cvt_pk_bf16_f32 v88, v88, v88", ("ds_write_b16 v124, v88", "si"))
    at(OPT["pB"], lambda: a.wvm("wm"), lambda: a.nl("si"), lambda: stamp("wm"), "s_barrier")
    for ks in range(4):
        at(OPT["pB"] + ks, (f"ds_read_b64_tr_b16 {v(128+4*ks,2)}, v47 offset:{RW*ks}\nds_read_b64_tr_b16 {v(130+4*ks,2)}, v47 offset:{RW*ks+1024}\nds_read_b128 {v(144+4*ks,4)}, v127 offset:{64*ks}", f"m{ks}"))
        at(OPT["pB"] + 12 + 3 * ks, lambda ks=ks: a.nl(f"m{ks}"), f"v_mfma_f32_16x16x32_bf16 v[68:71], {v(128+4*ks,4)}, {v(144+4*ks,4)}, {0 if ks == 0 else 'v[68:71]'}")
    at(OPT["pB"] + 29, "s_mov_b32 vcc_lo, 0xaaaaaaaa\ns_mov_b32 vcc_hi, 0xaaaaaaaa\nv_cndmask_b32 v56, v68, v70, vcc\nv_cndmask_b32 v57, v69, v71, vcc\ns_mov_b32 exec_lo, 0x00030003\ns_mov_b32 exec_hi, 0x00030003",
       (f"buffer_store_dwordx4 v[56:59], v126, {WS}, s25 offen sc1", "mst"), "s_mov_b64 exec, -1", lambda: stamp("modpub"))
    wjob(OPT["pW2"], "w2", 4096, "s21", 1024)
    for i in range(len(CH) + 1):
        run(ins.get(i, []))
        if i < len(CH): a(CH[i])
    stamp("chend")
    a.nv("tab")
    a(f"v_and_b32 v21, 31, v1\nv_mul_u32_u24 v21, {TROW}, v21\nv_lshrrev_b32 v22, 5, v1\nv_lshl_add_u32 v22, v22, 4, s44\nv_add_u32 v21, v21, v22\nv_add_u32 v20, v18, v22")
    a(f"s_lshl_b32 s26, {sR}, 5\ns_add_u32 s26, s26, {FLAGS}\ns_cmp_eq_u32 {sW}, 3\ns_cselect_b32 s26, s26, {OOB}")
    a.nv("w1s")
    a("s_waitcnt lgkmcnt(0)\ns_barrier")
    KA, KB, KD = 128, 192, 104
    def rdk(s_): a(f"ds_read_b128 {v(KA+4*s_,4)}, v20 offset:{32*s_}\nds_read_b128 {v(KB+4*s_,4)}, v21 offset:{32*s_}", f"k{s_}")
    rdk(0)
    a("s_mov_b64 exec, 1")
    a(f"buffer_store_dword v95, v76, {WS}, s26 offen sc1", "fl")
    a("s_mov_b64 exec, -1")
    stamp("chains")
    for s_ in range(1, 6): rdk(s_)
    a(f"v_and_b32 v22, 31, v1\nv_lshrrev_b32 v23, 5, v1\nv_lshl_add_u32 v22, v23, 6, v22\nv_lshlrev_b32 v22, 4, v22")
    a(f"s_lshr_b32 s44, {sW}, 1\ns_mul_i32 s44, s44, {KCH}\ns_lshl_b32 s46, s45, 11\ns_sub_u32 s46, s44, s46\ns_add_u32 s46, s46, {L_K + 255*16 - 512}\nv_sub_u32 v22, s46, v22")
    a(f"s_cmp_eq_u32 s45, 0\ns_cselect_b32 s46, 0, 0xaaaaaaaa\ns_cselect_b32 s64, 1, 0\ns_mov_b32 s47, s46\ns_mov_b32 s65, 0")
    a(f"v_mov_b32 v24, {sD}\nv_cndmask_b32 v23, 0, v24, s[64:65]\ns_add_u32 s66, s44, {L_K + KCP + 4096}\nv_mov_b32 v24, s66")
    SW, XG, MP, FL = 72, 88, 100, 103
    sweep = [f"buffer_load_dwordx4 {v(XG+4*k,4)}, v17, {WS}, {k4(k)} offen sc1" for k in range(3)]
    sweep += [f"buffer_load_dwordx4 {v(SW+4*k,4)}, v25, {WS}, {k4(1+k)} offen sc1" for k in range(4)]
    sweep += [f"buffer_load_dwordx3 {v(MP,3)}, v16, {WS}, s24 offen sc1", f"buffer_load_dword v{FL}, v26, {WS}, {k4(6)} offen sc1"]
    kf = [f"s_mul_i32 s66, {sR}, 12288\ns_add_u32 s66, s66, {XT}\nv_lshlrev_b32 v25, 4, v0\nv_add_u32 v17, s66, v25\nv_lshlrev_b32 v26, 5, v0",
          "v_min_u32 v16, 23, v1\nv_lshlrev_b32 v16, 9, v16\nv_lshrrev_b32 v36, 2, v1\nv_cmp_eq_u32 vcc, 4, v36",
          "v_mov_b32 v37, 0x2b800000\nv_cndmask_b32 v37, 0, v37, vcc\nv_cmp_eq_u32 s[66:67], 1, v36\ns_or_b64 vcc, vcc, s[66:67]",
          "v_cndmask_b32 v36, 0, 1.0, vcc",
          f"v_lshrrev_b32 v28, 5, v1\nv_mul_u32_u24 v19, {HPAR}, v28\nv_and_b32 v27, 15, v1\nv_lshl_add_u32 v19, v27, 4, v19",
          f"v_bfe_u32 v29, v1, 4, 1\nv_lshl_add_u32 v19, v29, 3, v19\ns_lshl_b32 s66, {sW}, 8\ns_add_u32 s66, s66, {L_H + 15*16}\nv_add_u32 v19, s66, v19",
          f"v_add_u32 v27, v27, v28\nv_lshlrev_b32 v27, 4, v27\nv_mul_u32_u24 v29, {HPAR}, v29",
          f"s_lshr_b32 s66, {sW}, 1\ns_mul_i32 s66, s66, {HCH}\ns_lshl_b32 s67, s45, 7\ns_sub_u32 s66, s66, s67\ns_add_u32 s66, s66, {L_H + 14*16 - 96}\nv_add3_u32 v27, v27, v29, s66"]
    sq = list(sweep)
    for s_ in range(16):
        a.wl(f"k{s_}")
        a(f"v_mfma_f32_32x32x16_bf16 {v(KD,16)}, {v(KA+4*s_,4)}, {v(KB+4*s_,4)}, {0 if s_ == 0 else v(KD,16)}")
        if s_ + 6 < 16: rdk(s_ + 6)
        if kf: a(kf.pop(0))
        if s_ >= OPT["sw"]:
            for l in sq[:2]: a(l, "sw")
            sq = sq[2:]
    stamp("kmf")
    a("v_and_b32 v20, 15, v1\nv_add_u32 v21, 1, v20\nv_lshrrev_b32 v21, 1, v21\nv_lshrrev_b32 v28, 4, v1\nv_lshlrev_b32 v28, 2, v28\nv_sub_u32 v21, v28, v21\nv_lshlrev_b32 v21, 2, v21")
    a(f"v_and_b32 v20, 1, v20\nv_mul_u32_u24 v20, {KCP}, v20\nv_sub_u32 v21, v21, v20")
    a(f"s_lshl_b32 s66, s45, 8\ns_sub_u32 s66, s44, s66\ns_add_u32 s66, s66, {L_K + KCP + 4*(1016 - 48 - 128)}\nv_add_u32 v20, s66, v21\nv_add_u32 v21, -1024, v20")
    if OPT["sw"] < 20:
        for l in sq: a(l, "sw")
        sq = []
    P0, P1 = KD, KD + 8
    a(f"v_add_f32 v{P0}, v{P0}, v23\nv_cndmask_b32 v{P0+4}, v{P0+4}, v{P0+5}, s[46:47]\nv_cndmask_b32 v{P1+4}, v{P1+4}, v{P1+5}, s[46:47]")
    t0 = [P0 + e for e in range(8)] + [P1 + 1]
    t1 = [P1, P1] + [P1 + e for e in range(2, 8)] + [P1 + 7]
    for i, (t, sh, off) in enumerate(((t0, 0, 512), (t0, 1, 512 + KCP), (t1, 0, 0), (t1, 1, KCP))):
        d = 40 + 4 * i
        for q in range(4): a(f"v_cvt_pk_bf16_f32 v{d+q}, v{t[7-2*q+sh]}, v{t[6-2*q+sh]}")
        a(f"ds_write_b128 v22, {v(d,4)} offset:{off}")
    a(f"v_cvt_pk_bf16_f32 v23, v{P0}, 0\ns_mov_b64 exec, s[64:65]\nds_write_b32 v24, v23\ns_mov_b64 exec, -1")
    for l in sq: a(l, "sw")
    a("s_waitcnt lgkmcnt(0)")
    for i in range(2, 4): a(f"v_add_u32 v{20+i}, {-1024*i}, v20")
    a("s_barrier")
    stamp("kgen")
    if stop == 1:
        dump_lds(L_K, 2 * KCH); return finish_kernel()
    def Afr(rho, aa, n=4, o=0): return ar(16 * rho + 4 * aa + o, n) if aa < 4 else v(192 + 32 * (rho & 1) + 4 * (aa - 4) + o, n)
    def Bfr(rho, b): return v(128 + 16 * rho + 4 * b, 4) if b < 4 else v(208 + 32 * (rho & 1) + 4 * (b - 4), 4)
    def rdA(rho, aa):
        o = 16 * (3 - rho) + 128 * (1 - (aa & 1))
        return [(f"ds_read2_b32 {Afr(rho,aa,2,2*h)}, v{20+(aa>>1)} offset0:{o+2*h} offset1:{o+2*h+1}", f"A{rho}_{aa}") for h in range(2)]
    def rdB(rho, b): return (f"ds_read_b128 {Bfr(rho,b)}, v27 offset:{256*b + 32*(3-rho)}", f"B{rho}_{b}")
    for rho in range(4):
        for aa in range(4): run(rdA(rho, aa))
    stamp("afr")
    poll(sweep, tagchk([XG + 3, XG + 7, XG + 10, SW + 3, SW + 7, SW + 11, SW + 15, MP + 2, FL], 29), "sw")
    stamp("sync1")
    XF, HT = 56, 104
    M = [f"v_add_f32_dpp v{MP+e}, v{MP+e}, v{MP+e} quad_perm:{q} row_mask:0xf bank_mask:0xf" for q in ("[1,0,3,2]", "[2,3,0,1]") for e in range(2)]
    M += [f"v_cvt_pk_bf16_f32 v{MP+1}, v{MP}, v{MP+1}", f"v_lshlrev_b32 v{MP}, 16, v{MP+1}", f"v_and_b32 v{MP+1}, 0xffff0000, v{MP+1}"]
    M += [f"v_add_f32 v{MP+e}, v{MP+e}, v{c}" for c in (36, 37) for e in range(2)] + [f"v_cvt_pk_bf16_f32 v{MP}, v{MP}, v{MP+1}"]
    xs = [XG + s_ + s_ // 3 for s_ in range(8)]
    X = [f"v_lshlrev_b32 v{XF+2*j}, 16, v{xs[j]}\nv_and_b32 v{XF+2*j+1}, 0xffff0000, v{xs[j]}" for j in range(8)]
    X += [f"v_lshlrev_b32 v{40+2*i}, 16, v{SW+4*i+2}\nv_and_b32 v{41+2*i}, 0xffff0000, v{SW+4*i+2}" for i in range(4)]
    run(merge([M, X]))
    M = [f"v_readlane_b32 s{12+m}, v{MP}, {4*m}" for m in (0, 1, 2, 4, 3, 5)]
    X = [f"v_pk_add_f32 {v(HT+2*j,2)}, {v(XF+2*j,2)}, {v(40+2*(j>>1),2)} op_sel:[0,{j&1}] op_sel_hi:[1,{j&1}] neg_lo:[0,1] neg_hi:[0,1]" for j in range(8)]
    run(merge([M, X]))
    a("s_lshl_b32 s4, s13, 16\ns_and_b32 s5, s13, 0xffff0000\ns_lshl_b32 s6, s16, 16\ns_and_b32 s7, s16, 0xffff0000\ns_lshl_b32 s8, s12, 16\ns_and_b32 s9, s12, 0xffff0000\ns_lshl_b32 s10, s14, 16\ns_and_b32 s11, s14, 0xffff0000")
    a("v_mov_b32 v34, s8\nv_mov_b32 v35, s9")
    for j in range(8): a(f"v_pk_mul_f32 {v(HT+2*j,2)}, {v(HT+2*j,2)}, {v(SW+4*(j>>1),2)} op_sel:[0,{j&1}] op_sel_hi:[1,{j&1}]")
    for hf in range(2):
        for j in range(4 * hf, 4 * hf + 4): a(f"v_pk_fma_f32 {v(HT+2*j,2)}, {v(HT+2*j,2)}, s[4:5], v[34:35]")
        for c in range(2):
            for q in range(2): a(f"v_cvt_pk_bf16_f32 v{40+4*hf+2*c+q}, v{HT+8*hf+4*q+c}, v{HT+8*hf+4*q+2+c}")
            a(f"ds_write_b64 v19, {v(40+4*hf+2*c,2)} offset:{HCH*c + 1024*hf}")
    a(f"v_mov_b32 v28, s16\nv_mov_b32 v29, s15\nv_mov_b32 v30, s17\nv_mov_b32 v31, {sTAG}\nv_mov_b32 v6, 0\ns_add_u32 s26, s26, {MODF - FLAGS}")
    a("s_waitcnt lgkmcnt(0)\ns_barrier")
    for b in range(4): a(*rdB(0, b))
    a("s_mov_b64 exec, 1")
    a(f"buffer_store_dwordx4 v[28:31], v6, {WS}, s26 offen sc1", "mf")
    a("s_mov_b64 exec, -1")
    stamp("hgen")
    if stop == 2:
        dump_lds(L_H, 2 * HCH); return finish_kernel()
    ACC = 72; Y = 104
    for b in range(4): a(*rdB(1, b))
    sG, sJ, sH = "s44", "s45", "s27"
    a(f"s_lshr_b32 {sG}, {sR}, 3\ns_and_b32 {sJ}, {sR}, 7\ns_mul_i32 s46, {sJ}, 11\ns_cmp_eq_u32 {sJ}, 7\ns_cselect_b32 s46, 76, s46\ns_cmp_lt_u32 {sJ}, 6\ns_cselect_b32 s47, 11, 10\ns_add_u32 s47, s47, s46")
    a(f"s_mul_i32 s64, {sW}, 3\ns_add_u32 s46, s46, s64\ns_mul_i32 {sH}, {sG}, {HG}\ns_add_u32 {sH}, {sH}, {H}")
    def W1fr(ks, t): return ar(64 + 12 * ks + 4 * t, 4)
    w1loads = [(f"buffer_load_dwordx4 {W1fr(ks,t)}, v{8+t}, {WS}, {k4(ks>>2)} offen offset:{1024*(ks&3)} sc1", f"w1_{ks}") for ks in range(16) for t in range(3)]
    for t in range(3): a(f"s_add_u32 s65, s46, {t}\ns_lshl_b32 s66, s65, 14\ns_add_u32 s66, s66, {W1T}\ns_cmp_lt_u32 s65, s47\ns_cselect_b32 s66, s66, {OOB}\nv_add_u32 v{8+t}, s66, v3")
    mf = []
    def order(pairs):
        by = {}
        for p in pairs: by.setdefault(p[0] + p[1], []).append(p)
        out = []; last = None
        while any(by.values()):
            k = max((k for k in by if by[k] and (k != last or sum(1 for q in by if by[q]) == 1)), key=lambda k: len(by[k]))
            out.append(by[k].pop(0)); last = k
        return out
    seen = set()
    for stg in range(2):
        for rho in range(4):
            if stg == 0: o = order([(aa, b) for b in range(4) for aa in range(4 - b)])
            else:
                o = order([(aa, b) for aa in range(4) for b in range(4) if aa + b >= 4]) + order([(aa, b) for b in range(8) for aa in range(8 - b) if max(aa, b) >= 4])
                if rho == 3:
                    by = {k: [p for p in o if p[0] + p[1] == k] for k in range(4, 8)}
                    o = [by[k].pop(0) for k in [5, 4] * 5 + [7, 5] + [6, 7] * 7]
            for aa, b in o:
                nt = aa + b; d = v(ACC + 4 * nt, 4)
                mf.append((f"v_mfma_f32_16x16x32_bf16 {d}, {Afr(rho,aa)}, {Bfr(rho,b)}, {d if nt in seen else 0}", [f"A{rho}_{aa}", f"B{rho}_{b}"], nt)); seen.add(nt)
    fl = {}
    def fat(p, *items): fl.setdefault(p, []).extend(items)
    def stream(rho): return [x for e in range(4, 8) for x in rdA(rho, e) + [rdB(rho, e)]]
    for i, x in enumerate([rdB(r_, b) for r_ in (2, 3) for b in range(4)] + stream(0) + stream(1)): fat(i, x)
    for r_, p in ((2, 66), (3, 92)):
        for i, x in enumerate(stream(r_)): fat(p + i, x)
    V = ["v_and_b32 v4, 31, v1", "v_lshlrev_b32 v4, 4, v4", "v_lshrrev_b32 v5, 5, v1", "v_lshl_add_u32 v4, v5, 10, v4"]
    for t in range(3):
        V += [f"s_add_u32 s65, s46, {t}\ns_lshr_b32 s67, s65, 1\ns_lshl_b32 s67, s67, 12\ns_and_b32 s68, s65, 1", f"s_lshl_b32 s68, s68, 9\ns_add_u32 s67, s67, s68\ns_add_u32 s67, s67, {sH}",
              f"s_cmp_lt_u32 s65, s47\ns_cselect_b32 s67, s67, {OOB}\nv_add_u32 v{12+t}, s67, v4"]
    V += [f"v_mov_b32 v{48+i}, -1" for i in range(4)]
    nV = len(V)
    V += [f"s_lshl_b32 s66, {sW}, 12\ns_add_u32 s66, s66, {L_RED}\nv_add_u32 v24, s66, v3", f"s_lshl_b32 s66, {sW}, 10\ns_add_u32 s66, s66, {L_RED}\nv_add_u32 v25, s66, v3"]
    V += ["v_mov_b32 v32, s10", "v_mov_b32 v33, s11", "v_mul_f32 v32, s6, v32", "v_mul_f32 v33, s7, v33"]
    V += [f"v_mul_f32 v{XF+i}, s{6+(i&1)}, v{XF+i}" for i in range(16)]
    for i, x in enumerate(V): fat(i, x)
    assert len(V) <= 40
    fat(0, f"s_or_b32 s69, {sR}, {sW}\ns_cmp_eq_u32 s69, 0\ns_cselect_b32 s69, 0, {OOB}", (f"buffer_store_dword v31, v6, {WS}, s69 offen sc1", "ep"))
    for i in range(6): fat(nV + 2 * i, (f"buffer_store_dwordx4 v[48:51], v{12+(i>>1)}, {WS}, 0 offen offset:{2048*(i&1)} sc1", "hpf"))
    NW = OPT["nw1c"]
    for i in range(NW): fat(1 + (i * 132) // NW, w1loads[i])
    def lastuse(nt): return max(i for i, m in enumerate(mf) if m[2] == nt)
    for nt in range(8): fat(min(lastuse(nt) + 4, 144), (f"ds_write_b128 v24, {v(ACC+4*nt,4)} offset:{16384*(nt>>2) + 1024*(nt&3)}", f"rw{nt>>2}"))
    def fin(hf):
        L = [[(f"ds_read_b128 {v(Y+4*s_,4)}, v25 offset:{16384*hf + 4096*s_}", f"y{hf}_{s_}") for s_ in range(4)]]
        F = []
        for c in range(2):
            for kh in range(2):
                F.append(lambda c=c, kh=kh: a.nl(f"y{hf}_{2*c+kh}"))
                F += [f"v_fma_f32 v{XF+8*hf+2*r_+c}, v{Y+8*c+4*kh+r_}, v{32+c}, v{XF+8*hf+2*r_+c}" for r_ in range(4)]
            F += [f"v_cvt_pk_bf16_f32 v{40+2*c+q}, v{XF+8*hf+4*q+c}, v{XF+8*hf+4*q+2+c}" for q in range(2)]
        F += [(f"buffer_store_dwordx4 v[40:43], v2, {WS}, {'s69' if hf else 0} offen sc1", f"ust{hf}"), lambda: stamp(f"u{hf}pub")]
        return L[0], F
    rd, F = fin(0)
    fat(46, lambda: a.nl("rw0"), "s_barrier", *rd)
    p = 50; n = 0
    for x in F:
        fat(p, x)
        if not callable(x):
            n += 1
            if n % 2 == 0: p += 1
    mfl = [f"buffer_load_dwordx4 v[52:55], v26, {WS}, {k4(8)} offen sc1"]
    fat(OPT.get("mfp", 80), (mfl[0], "mfl"))
    fat(104, f"v_lshlrev_b32 v19, 2, v0\nv_add_u32 v19, {L_MOD}, v19\ns_mov_b32 s69, {1<<20}")
    fat(134, lambda: poll(mfl, tagchk([55], 7), "mfl"), "ds_write2st64_b32 v19, v52, v53 offset0:0 offset1:4\nds_write_b32 v19, v54 offset:2048")
    V = [f"s_lshl_b32 s66, {sG}, 15\ns_add_u32 s66, s66, {U}\nv_lshl_add_u32 v16, v0, 4, s66", "v_and_b32 v4, 32, v1", "v_lshlrev_b32 v18, 4, v0", "v_lshlrev_b32 v5, 1, v4", "v_xor_b32 v18, v18, v5",
         "v_and_b32 v5, 16, v1", "v_mul_u32_u24 v28, 36, v5", "v_and_b32 v7, 8, v1", "v_lshl_add_u32 v28, v7, 4, v28", "v_and_b32 v7, 48, v3", "v_add_u32 v28, v28, v7", "v_and_b32 v7, 4, v1", "v_lshl_add_u32 v28, v7, 1, v28",
         f"s_lshr_b32 s66, {sW}, 1\ns_lshl1_add_u32 s66, {sJ}, s66\ns_lshl_b32 s67, s66, 11\nv_lshl_add_u32 v30, v4, 5, v28", f"s_and_b32 s68, {sW}, 1\ns_lshl_b32 s68, s68, 6\ns_or_b32 s67, s67, s68\nv_xor_b32 v30, s67, v30",
         "v_lshl_add_u32 v28, v4, 3, v28", "v_xor_b32 v29, 64, v28",
         "v_lshrrev_b32 v4, 2, v4", "v_and_b32 v7, 1, v1", "v_lshl_add_u32 v34, v7, 10, v4", f"v_add_u32 v5, {L_MOD}, v5", "v_add_u32 v34, v34, v5",
         f"s_lshl_b32 s66, s66, 6\ns_add_u32 s66, s66, {L_MOD}\nv_and_b32 v35, 48, v1", "v_add_u32 v35, s66, v35"]
    for i, x in enumerate(V): fat(106 + i, x)
    for i, m in enumerate(mf):
        for t in m[1]: a.nl(t)
        a(m[0]); run(fl.get(i, []))
    run(fl.get(144, []))
    a.nv("hpf")
    a("s_waitcnt lgkmcnt(0)\ns_barrier")
    stamp("conv")
    rd, F = fin(1)
    run(rd)
    UST = 224
    ul = [[f"buffer_load_dwordx4 {v(UST+4*i,4)}, v{16+hf}, {WS}, {k4(i)} offen sc1" for i in range(8)] for hf in range(2)]
    if OPT.get("u0early", 0):
        for l in ul[0]: a(l, "u0")
    run(F)
    if stop == 3: return finish_kernel()
    if not OPT.get("u0early", 0):
        for l in ul[0]: a(l, "u0")
    CS, TT, CT, A1, B1, XR, RC, PSR, TM = 36, 48, 20, 60, 84, 100, 116, 124, 140
    CT = 144
    MT = 156
    def rdM(ks): return (f"ds_read2_b64 {v(MT+4*ks,4)}, v34 offset0:{8*ks} offset1:{8*ks+4}", f"mt{ks}")
    a(f"ds_read_b128 {v(TM,4)}, v35", "ctab")
    for ks in range(16): a(*rdM(ks))
    w1q = w1loads[NW:]
    a(f"v_add_u32 v17, s69, v16\nv_and_b32 v19, 0xf0, v3\ns_lshl_b32 s24, {sG}, 13\ns_add_u32 s24, s24, {PS}")
    a(f"s_mul_i32 s66, {sJ}, 43\ns_mul_i32 s67, {sW}, 11\ns_add_u32 s66, s66, s67\ns_lshl_b32 s66, s66, 12\ns_add_u32 s66, s66, {W2T}\ns_lshr_b32 s68, {sW}, 1\ns_lshl_b32 s68, s68, 11\ns_or_b32 s66, s66, s68")
    a(f"v_add_u32 v5, s66, v3\nv_xor_b32 v4, 0x800, v5\ns_lshl_b32 s67, s67, 12\ns_add_u32 s67, s67, {sH}\ns_and_b32 s68, {sW}, 1\ns_lshl_b32 s68, s68, 10\ns_or_b32 s67, s67, s68\nv_add_u32 v7, s67, v3\nv_xor_b32 v6, 0x400, v7")
    a(f"s_cmp_eq_u32 {sW}, 3\ns_cselect_b32 s18, {OOB}, {k4(10)}")
    ks11 = lambda s_: k4(s_) if s_ < 10 else "s18"
    def W2fr(s_, b, e):
        f = 4 * s_ + 2 * b + e
        return ar(4 * f, 4) if f < 16 else v(144 + 4 * (f - 16), 4)
    w2q = [(f"buffer_load_dwordx4 {W2fr(s_,b,e)}, v{4+b}, {WS}, {ks11(s_)} offen offset:{1024*e} sc1", f"w2_{s_}") for s_ in range(11) for b in range(2) for e in range(2)]
    def cst(ks):
        a.nl(f"mt{ks}"); a.nv(f"w1_{ks}")
        for t in range(3): a(f"v_mfma_f32_16x16x32_bf16 {v(CT+4*t,4)}, {W1fr(ks,t)}, {v(MT+4*ks,4)}, {0 if ks == 0 else v(CT+4*t,4)}")
    NCS = OPT["ncs"]
    a.nl("ctab")
    V = [f"v_lshlrev_b32 v{RC+2*i}, 16, v{TM+i}\nv_and_b32 v{RC+2*i+1}, 0xffff0000, v{TM+i}\nv_rcp_f32 v{RC+2*i}, v{RC+2*i}\nv_rcp_f32 v{RC+2*i+1}, v{RC+2*i+1}" for i in range(4)]
    for ks in range(NCS):
        for l in w1q[:3]: a(*l)
        w1q = w1q[3:]
        cst(ks)
        if V: a(V.pop(0))
    run(V); run(w1q)
    def rdU(hf, ks, rt): return (f"ds_read_b64_tr_b16 {v(B1+8*(ks&1)+4*rt,2)}, v{28+rt} offset:{32768*hf+2048*ks}\nds_read_b64_tr_b16 {v(B1+8*(ks&1)+4*rt+2,2)}, v{28+rt} offset:{32768*hf+2048*ks+1024}", f"U{hf}_{ks}_{rt}")
    def ustage(hf):
        for c in range(2):
            poll(ul[hf][4*c:4*c+4], sent([UST + 16 * c + 4 * i for i in range(4)], 11), f"u{hf}") if False else None
        poll(ul[hf], sent([UST + 4 * i for i in range(8)], 11), f"u{hf}")
        for i in range(8): a(f"ds_write_b128 v18, {v(UST+4*i,4)} offset:{32768*hf + 4096*i}")
        a("s_waitcnt lgkmcnt(0)\ns_barrier")
        stamp(f"u{hf}arr")
        for e in range(2): a(f"ds_read_b64_tr_b16 {v(TM+2*e,2)}, v30 offset:{32768*hf + 256*e}", "xres")
        for rt in range(2): a(*rdU(hf, 0, rt))
        x = XR + 8 * hf
        a.nl("xres")
        for i in range(4): a(f"v_lshlrev_b32 v{x+2*i}, 16, v{TM+i}\nv_and_b32 v{x+2*i+1}, 0xffff0000, v{TM+i}")
        for i in range(4): a(f"v_pk_mul_f32 {v(x+2*i,2)}, {v(x+2*i,2)}, {v(RC+2*i,2)}")
        a(f"v_pk_add_f32 {v(TM,2)}, {v(x,2)}, {v(x+2,2)}\nv_pk_mul_f32 {v(TM+2,2)}, {v(x,2)}, {v(x,2)}")
        for i in range(1, 4):
            if i > 1: a(f"v_pk_add_f32 {v(TM,2)}, {v(TM,2)}, {v(x+2*i,2)}")
            a(f"v_pk_fma_f32 {v(TM+2,2)}, {v(x+2*i,2)}, {v(x+2*i,2)}, {v(TM+2,2)}")
        a(f"v_add_f32 v{TM}, v{TM}, v{TM+1}\nv_add_f32 v{TM+1}, v{TM+2}, v{TM+3}")
        p_, q_ = TM, TM + 1
        a(f"v_permlane32_swap_b32 v{p_}, v{q_}\nv_add_f32 v{p_}, v{p_}, v{q_}\nv_mov_b32 v{q_}, v{p_}\nv_permlane16_swap_b32 v{p_}, v{q_}\nv_add_f32 v{p_}, v{p_}, v{q_}\nv_mov_b32 v{q_}, v{p_}\nv_permlane32_swap_b32 v{p_}, v{q_}")
        a("s_mov_b64 exec, 0xffff")
        a(f"buffer_store_dwordx2 {v(TM,2)}, v19, {WS}, s23 offen sc1", f"pst{hf}")
        a(f"s_mov_b64 exec, -1\ns_add_u32 s23, s23, 4096")
    psl = [[f"buffer_load_dwordx4 {v(PSR+4*i,4)}, v3, {WS}, {'s25' if hf else 's24'} offen offset:{1024*i} sc1" for i in range(4)] for hf in range(2)]
    def Hfr(hf, s_, aa, n=4): return ar(64 + 96 * hf + 44 * aa + 4 * s_, n)
    hl = [[[f"buffer_load_dwordx4 {Hfr(hf,s_,aa)}, v{6+aa}, {WS}, {ks11(s_)} offen offset:{2048*hf} sc1" for s_ in range(11)] for aa in range(2)] for hf in range(2)]
    def gemm1(hf, fills):
        for ks in range(16):
            f = list(fills.get(ks, []))
            if hf == 0 and ks >= NCS: cst(ks)
            for rt in range(2):
                a.nl(f"U{hf}_{ks}_{rt}")
                for t in range(3):
                    d = v(A1 + 8 * t + 4 * rt, 4)
                    a(f"v_mfma_f32_16x16x32_bf16 {d}, {W1fr(ks,t)}, {v(B1+8*(ks&1)+4*rt,4)}, {0 if ks == 0 else d}")
                    if t == 0 and ks < 15: a(*rdU(hf, ks + 1, rt))
                    elif f: run([f.pop(0)])
            run(f)
    def epi1(hf):
        poll(psl[hf], sent([PSR + 2 * i for i in range(8)], 11), f"ps{hf}")
        P = PSR
        for m in (4, 2):
            for i in range(m): a(f"v_pk_add_f32 {v(P+2*i,2)}, {v(P+2*i,2)}, {v(P+2*i+2*m,2)}")
        a(f"v_permlane32_swap_b32 v{P}, v{P+2}\nv_permlane32_swap_b32 v{P+1}, v{P+3}\nv_pk_add_f32 {v(P,2)}, {v(P,2)}, {v(P+2,2)}")
        a(f"v_permlane16_swap_b32 v{P}, v{P+1}\nv_add_f32 v{P}, v{P}, v{P+1}\nv_mul_f32 v{P}, 0x3b000000, v{P}\nv_mov_b32 v{P+1}, v{P}\nv_permlane16_swap_b32 v{P}, v{P+1}")
        m_, r_ = P, P + 1
        a(f"v_fma_f32 v{r_}, -v{m_}, v{m_}, v{r_}\nv_max_f32 v{r_}, 0, v{r_}")
        a(f"v_cvt_pk_bf16_f32 v{r_}, v{r_}, v{m_}\nv_and_b32 v{m_}, 0xffff0000, v{r_}\nv_and_b32 v{P+2}, 0xffff0000, v{r_}\nv_lshlrev_b32 v{r_}, 16, v{r_}\nv_add_f32 v{r_}, 0x3727c5ac, v{r_}")
        a(f"v_cvt_pk_bf16_f32 v{r_}, v{r_}, v{r_}\nv_permlane32_swap_b32 v{m_}, v{P+2}\nv_lshlrev_b32 v{r_}, 16, v{r_}\nv_sqrt_f32 v{r_}, v{r_}")
        E1 = [f"v_pk_fma_f32 {v(A1+8*t+4*rt+2*q,2)}, {v(CS+4*t+2*q,2)}, {v(P+2*rt,2)}, {v(A1+8*t+4*rt+2*q,2)} op_sel:[0,0,0] op_sel_hi:[1,0,1] neg_lo:[0,1,0] neg_hi:[0,1,0]" for t in range(3) for rt in range(2) for q in range(2)]
        a(E1.pop(0))
        a(f"v_cvt_pk_bf16_f32 v{r_}, v{r_}, v{r_}\nv_lshlrev_b32 v{r_}, 16, v{r_}\nv_rcp_f32 v{P+3}, v{r_}\nv_rcp_f32 v{r_}, v{r_}")
        run(E1[:3]); E1 = E1[3:]
        a(f"v_permlane32_swap_b32 v{r_}, v{P+3}")
        for t in range(3):
            o = P + 4 + 4 * t
            for rt in range(2):
                for q in range(2):
                    d = v(A1 + 8 * t + 4 * rt + 2 * q, 2)
                    a(f"v_pk_fma_f32 {d}, {d}, {v(P+2*rt,2)}, {v(TT+4*t+2*q,2)} op_sel:[0,1,0] op_sel_hi:[1,1,1]")
            for i in range(4): a(f"v_cvt_pk_bf16_f32 v{o+i}, v{A1+8*t+2*i}, v{A1+8*t+2*i+1}")
            for i in (0, 2, 1, 3): a(f"v_pk_max_i16 v{o+i}, v{o+i}, 0")
            run(E1[:2])
            a(f"v_permlane32_swap_b32 v{o}, v{o+2}\nv_permlane32_swap_b32 v{o+1}, v{o+3}")
            a(f"buffer_store_dwordx4 {v(o,4)}, v{12+t}, {WS}, 0 offen offset:{2048*hf} sc1", f"hst{hf}")
            run(E1[2:4]); E1 = E1[4:]
        stamp(f"h{hf}pub")
    def spread(fills, items, k0, k1):
        for i, x in enumerate(items): fills.setdefault(k0 + (i * (k1 - k0)) // len(items), []).append(x)
    split = [f"v_mov_b32_dpp v{CS+i}, v{CT+i} quad_perm:[0,0,2,2] row_mask:0xf bank_mask:0xf\nv_mov_b32_dpp v{TT+i}, v{CT+i} quad_perm:[1,1,3,3] row_mask:0xf bank_mask:0xf" for i in range(12)]
    ustage(0)
    a("s_add_u32 s25, s24, 4096")
    f = {}
    spread(f, [(l, "u1") for l in ul[1]], OPT["u1ks"], OPT["u1ks"] + 2)
    spread(f, [(l, "ps0") for l in psl[0]], OPT["ps0ks"], OPT["ps0ks"] + 1)
    spread(f, w2q[:16], OPT["u1ks"] + 2, 16); w2q = w2q[16:]
    gemm1(0, f)
    stamp("g1a")
    run(split)
    if OPT["ord"] == 0:
        epi1(0); run(w2q[:8]); w2q = w2q[8:]; ustage(1)
    else:
        run(w2q[:8]); w2q = w2q[8:]; ustage(1); epi1(0)
    f = {}
    spread(f, w2q, 0, OPT["ps1ks"])
    spread(f, [(l, "ps1") for l in psl[1]], OPT["ps1ks"], OPT["ps1ks"] + 1)
    h0 = [(l, f"h0_{aa}") for aa in range(2) for l in hl[0][aa]]
    nh = min(22, 4 * (16 - OPT["h0ks"]))
    if nh > 0: spread(f, h0[:nh], OPT["h0ks"], 16)
    gemm1(1, f)
    stamp("g1b")
    epi1(1)
    if stop == 4: return finish_kernel()
    run(h0[max(nh, 0):])
    A2, R2, GB = 24, 60, 84
    a(f"ds_read_b128 {v(TM,4)}, v35 offset:2048", "gtab")
    for sg in range(3): a(f"s_xor_b32 s66, {sW}, {[3,1,2][sg]}\ns_mul_i32 s66, s66, 6144\ns_add_u32 s66, s66, {L_R2 + 2048*sg}\nv_add_u32 v{8+sg}, s66, v3")
    a(f"s_mul_i32 s66, {sW}, 6144\ns_add_u32 s66, s66, {L_R2}\nv_add_u32 v15, s66, v3")
    a(f"s_lshr_b32 s66, {sG}, 3\ns_and_b32 s67, {sG}, 1\ns_lshl1_add_u32 s66, s66, s67\ns_and_b32 s67, {sW}, 1\ns_lshl1_add_u32 s66, s66, s67\ns_bfe_u32 s67, {sG}, 0x20001\ns_lshl4_add_u32 s66, s66, s67\ns_lshl_b32 s66, s66, 12")
    a(f"s_lshr_b32 s67, {sW}, 1\ns_lshl1_add_u32 s67, {sJ}, s67\ns_lshl_b32 s67, s67, 6\ns_add_u32 s66, s66, s67")
    a("v_and_b32 v20, 12, v1\nv_lshlrev_b32 v20, 12, v20\nv_and_b32 v21, 3, v1\nv_lshl_add_u32 v20, v21, 10, v20\nv_and_b32 v21, 48, v1\nv_add3_u32 v20, v20, v21, s66\nv_add_u32 v21, s69, v20")
    a.nl("gtab")
    for i in range(4): a(f"v_lshlrev_b32 v{GB+2*i}, 16, v{TM+i}\nv_and_b32 v{GB+2*i+1}, 0xffff0000, v{TM+i}")
    h1 = [(l, f"h1_{aa}") for aa in range(2) for l in hl[1][aa]]
    for hf in range(2):
        n = 0
        for sg in range(4):
            aa, b = sg >> 1, sg & 1
            if b == 0:
                chk = []
                for s_ in range(11): chk.append(f"v_accvgpr_read_b32 v{PSR+s_}, {Hfr(hf,s_,aa,1)}")
                poll(hl[hf][aa], chk + sent(range(PSR, PSR + 11), 11), f"h{hf}_{aa}")
                if aa == 0: stamp(f"h{hf}arr")
            for s_ in range(11):
                a.nv(f"w2_{s_}")
                for e in range(2):
                    d = v(A2 + 8 * sg + 4 * e, 4)
                    a(f"v_mfma_f32_16x16x32_bf16 {d}, {W2fr(s_,b,e)}, {Hfr(hf,s_,aa)}, {0 if s_ == 0 else d}")
                    k = 2 * s_ + e; n += 1
                    if sg > 0 and k in (3, 4): a(f"ds_write_b128 v{8+sg-1}, {v(A2+8*(sg-1)+4*(k-3),4)} offset:{24576*hf + 1024*(k-3)}")
                    if sg == 3 and k == 8: a("s_waitcnt lgkmcnt(0)\ns_barrier")
                    if sg == 3 and 8 <= k < 14: a(f"ds_read_b128 {v(R2+4*(k-8),4)}, v15 offset:{24576*hf + 1024*(k-8)}", "r2")
                    if sg == 3 and k == 17: a.wl("r2")
                    if sg == 3 and k >= 17:
                        for i in ([0, 1], [2, 3], [4, 5], [6], [7])[k - 17]: a(f"v_add_f32 v{R2+i}, v{R2+i}, v{R2+8+i}\nv_add_f32 v{R2+i}, v{R2+i}, v{R2+16+i}")
                    if hf == 0 and n >= OPT["h1n"] and h1 and not (sg == 3 and k >= 17): a(*h1.pop(0))
        run(h1); h1 = []
        stamp("g2a" if hf == 0 else "g2b")
        x = XR + 8 * hf
        for i in range(4): a(f"v_pk_fma_f32 {v(x+2*i,2)}, {v(R2+2*i,2)}, {v(GB+2*i,2)}, {v(x+2*i,2)}")
        for i in range(4): a(f"v_pk_fma_f32 {v(x+2*i,2)}, {v(A2+24+2*i,2)}, {v(GB+2*i,2)}, {v(x+2*i,2)}")
        for i in range(4): a(f"v_cvt_pk_bf16_f32 v{TM+i}, v{x+2*i}, v{x+2*i+1}")
        a(f"global_store_dwordx4 v{20+hf}, {v(TM,4)}, s[28:29] nt")
    return finish_kernel()

if __name__ == "__main__":
    stop = int(sys.argv[1]) if len(sys.argv) > 1 else 99
    stamps = int(sys.argv[2]) if len(sys.argv) > 2 else 0
    out = sys.argv[3] if len(sys.argv) > 3 else "k.s"
    probe = sys.argv[4] if len(sys.argv) > 4 else None
    open(out, "w").write(gen(stop, stamps, probe=probe))
```

```python
import sys
from asm2 import *

EPOCH = 0; STATS = 0x1000; FLAGS = 0x6000; MODF = 0x8000; MODP = 0x10000; HFL = 0xA000; FL1 = 0x30000; PS = 0x40000
W1T = 0x100000; W2T = 0x280000; U = 0x400000; H = 0x800000; XT = 0xE00000
HG = 43 * 4096
import os
XS = int(os.environ.get('XS', 12288))
OOB = 0x9000000; DBG = 0x2000000; STAMP_OFF = 0x8000000
TROW = 528; TCH = 60 * TROW
L_U = 0; L_K = 65536; KCP = 4160; KCH = 2 * KCP
L_H = 82176; HPAR = 2304; HCH = 2 * HPAR
L_RED = 91392; RW = 10240
L_MOD = 132352; L_SI = L_MOD + 3072; L_R2 = 65536
LDS_BYTES = L_SI + 1024
sW, sR, sTAG, sLDT, sD, sSPIN = "s3", "s40", "s41", "s42", "s43", "s48"
WS = "s[32:35]"; WJ = "s[36:39]"
def k4(k): return "0" if k == 0 else f"s{48 + k}"
GEXP = list(range(9)) + [256, 258, 260, 262, 264, 512, 516, 520, 768, 772, 776, 1024, 1032, 1280, 1288, 1536, 1544, 1792, 1800]

import os
ONLY = set(os.environ.get("ST", "start,sync1,hgen,u0pub,u1pub,u0arr,g1a,u1arr,h0pub,g1b,h1pub,h0arr,g2a,h1arr,g2b,end").split(","))
OPT = dict(oob=0, nopf=0, xl=1, xtt=-1, pF=150, fls=4, far=0, hst=0, htp=0, flp=-1, ht=0, w2t=-1, w1t=0, mpp=134, w1s=1, w1e=133, loc=1, stag=1, f0ks=1, p0ks=4, f1n=8, p1n=28, wb=1, wmpos=0, pI2=-1, touch=0, xtst=0, pW1=0, pB=96, pM=128, pP=160, pW2=200, sw=8, nw1c=24, ncs=8, u1ks=4, ps0ks=10, ps1ks=10, h0ks=8, h1n=44, ord=0, w2a=24)
for kv in os.environ.get("OPT", "").split(","):
    if kv: OPT[kv.split("=")[0]] = int(kv.split("=")[1])
def v(i, n=1): return f"v{i}" if n == 1 else f"v[{i}:{i+n-1}]"
def ar(i, n=1): return f"a{i}" if n == 1 else f"a[{i}:{i+n-1}]"

def page_delta(pg, e):
    if pg == 0: return e
    if pg == 1: return [0, 0, 2, 4, 4, 4, 6, 8, 8][e]
    if pg < 4: return [0, 0, 0, 4, 4, 4, 8, 8, 8][e]
    return [0, 0, 0, 0, 0, 8, 8, 8, 8][e]
def gtable():
    t = []
    for wp in range(2):
        for rho in range(32):
            i, h, r = rho >> 3, (rho >> 2) & 1, rho & 3
            ri = 4 * i + r; pg0 = 4 * wp + 2 * h
            if ri < 8: ex = 256 * pg0 + page_delta(pg0, ri)
            elif ri == 9: ex = 256 * pg0 + 8
            else: ex = 256 * (pg0 + 1) + page_delta(pg0 + 1, ri - 8)
            t.append((32 + GEXP.index(ex)) * TROW)
    return t

def rr(a, streams):
    while any(streams):
        for s in streams:
            if s: a(s.pop(0))

def merge(streams):
    out = []; streams = [list(s) for s in streams]
    while any(streams):
        for s in streams:
            if s: out.append(s.pop(0))
    return out

def gen(stop=99, stamps=False, probe=None):
    a = Asm(); tail = []; tail2 = []; tail3 = []
    nst = [0]; names = []
    def stamp(name):
        if stamps and name in ONLY:
            i = nst[0]; nst[0] += 1; assert i < 16; names.append(name)
            a(f"{'s_memtime' if stamps == 2 else 's_memrealtime'} s[{70+2*i}:{71+2*i}] ; stamp {name}")
    def poll(loads, check, tag):
        lr, lb = a.label("L_retry"), a.label("L_back")
        a.wvm(tag)
        for c in check: a(c)
        a(f"s_cbranch_vccnz {lr}\n{lb}:")
        tail.append((lr, lb, loads, check))
    def dstore(text, tag, pre="", post=""):
        lr, lb = a.label("L_far"), a.label("L_near")
        a(f"s_cmp_lg_u32 s63, 0\ns_cbranch_scc1 {lr}")
        a(text + (("", " nt", " sc0", " sc0 nt")[OPT['hst']] if tag.startswith("hst") else ""), tag); a(f"{lb}:")
        tail2.append((lr, lb, text))
    def finish_kernel():
        if stamps:
            a("s_waitcnt vmcnt(0) lgkmcnt(0)")
            stamp("end")
            a(f"s_waitcnt lgkmcnt(0)\ns_lshl_b32 s44, {sR}, 2\ns_add_u32 s44, s44, {sW}\ns_lshl_b32 s44, s44, 7\ns_add_u32 s44, s44, {STAMP_OFF}\nv_mov_b32 v1, 0\ns_mov_b64 exec, 1")
            for i in range(nst[0]): a(f"v_mov_b32 v2, s{70+2*i}\nbuffer_store_dword v2, v1, {WS}, s44 offen offset:{4*i}")
            a(f"v_mov_b32 v2, {sSPIN}\nbuffer_store_dword v2, v1, {WS}, s44 offen offset:124")
        if probe is not None:
            i = names.index(probe)
            a(f"s_add_u32 s44, s{70+2*i}, 4500\ns_mov_b32 s45, 20000\nL_probe:\ns_memrealtime s[46:47]\ns_waitcnt lgkmcnt(0)\ns_sub_u32 s45, s45, 1\ns_cbranch_scc1 L_end\ns_sub_u32 s46, s46, s44\ns_cmp_lt_i32 s46, 0\ns_cbranch_scc1 L_probe")
        if stamps: print("stamps:", names)
        a("L_end:\ns_endpgm")
        for lr, lb, loads, check in tail:
            a(f"{lr}:\ns_cmp_eq_u32 {sSPIN}, 0\ns_cbranch_scc1 {lb}\ns_sub_u32 {sSPIN}, {sSPIN}, 1\ns_nop 1")
            for l in loads: a(l)
            a("s_waitcnt vmcnt(0)")
            for c in check: a(c)
            a(f"s_cbranch_vccnz {lr}\ns_branch {lb}")
        for lr, lb, text in tail2: a(f"{lr}:\n" + text.replace("\n", " sc1\n") + f" sc1\ns_nop 0\ns_branch {lb}")
        for text in tail3: a(text)
        a(".p2align 6\n.type L_tab,@object\nL_tab:")
        a(".short " + ", ".join(str(x) for x in gtable()))
        a("L_tabend:")
        k = kernel_text(KN + "_kernel", a.finish(), 512, 256)
        return file_text([k], [f"grid=(256,1,1) block=(256,1,1) lds={LDS_BYTES}"])
    def dump_lds(off, nbytes):
        a("s_waitcnt vmcnt(0) lgkmcnt(0)\ns_barrier")
        a(f"v_lshlrev_b32 v2, 4, v0\nv_add_u32 v3, {off}, v2\ns_lshl_b32 s44, {sR}, 18\ns_add_u32 s44, s44, {DBG}")
        for i in range((nbytes + 4095) // 4096):
            a(f"ds_read_b128 v[4:7], v3\nv_add_u32 v3, 4096, v3\ns_waitcnt lgkmcnt(0)\nbuffer_store_dwordx4 v[4:7], v2, {WS}, s44 offen\ns_add_u32 s44, s44, 4096\ns_waitcnt vmcnt(0)")

    def run(items):
        for it in items:
            if callable(it): it()
            elif isinstance(it, tuple): a(*it)
            else: a(it)
    def tagchk(regs, acc):
        return [f"v_xor_b32 v{acc}, {sTAG}, v{regs[0]}"] + [f"v_bitop3_b32 v{acc}, v{acc}, v{t}, {sTAG} bitop3:0xf6" for t in regs[1:]] + [f"v_cmp_ne_u32 vcc, 0, v{acc}"]
    def sent(regs, acc):
        L = []; r = list(regs)
        L.append(f"v_max3_u32 v{acc}, v{r[0]}, v{r[1]}, v{r[2]}"); r = r[3:]
        while len(r) >= 2: L.append(f"v_max3_u32 v{acc}, v{acc}, v{r[0]}, v{r[1]}"); r = r[2:]
        if r: L.append(f"v_max_u32 v{acc}, v{acc}, v{r[0]}")
        return L + [f"v_cmp_eq_u32 vcc, -1, v{acc}"]
    sX, sI = "s30", "s31"
    def htouch(r):
        if OPT['ht'] >= 2:
            a(f"s_mul_i32 s2, {sR}, 22016\ns_add_u32 s2, s2, {H}\nv_min_u32 v{r}, 171, v0\nv_lshlrev_b32 v{r}, 7, v{r}")
            a(f"buffer_load_dword v{r}, v{r}, {WS}, s2 offen" + ("", " nt", " sc1")[OPT['ht'] - 2], "ht")
    def touch(base, r):
        return [f"s_mul_i32 s64, {sI}, {344*128}\ns_add_u32 s64, s64, {base}\nv_lshlrev_b32 v{r}, 7, v0\nv_min_u32 v{r+1}, {87*128}, v{r}",
                (f"buffer_load_dword v{r}, v{r}, {WS}, s64 offen sc1\ns_add_u32 s64, s64, {k4(8)}\nbuffer_load_dword v{r+1}, v{r+1}, {WS}, s64 offen sc1", "tw")]
    stamp("start")
    a(f"s_lshr_b32 {sI}, s2, 3\ns_cmp_ge_u32 {sI}, 32\ns_cbranch_scc1 L_end")
    a("s_load_dwordx16 s[4:19], s[0:1], 0\ns_load_dwordx8 s[20:27], s[0:1], 64\ns_load_dwordx2 s[32:33], s[0:1], 112")
    a("s_getpc_b64 s[46:47]\nL_pc:")
    a(f"s_lshl_b32 s44, {sI}, 10\nv_lshl_add_u32 v2, v0, 2, s44\nv_min_u32 v2, L_tabend-L_pc-4, v2")
    a("global_load_dword v100, v2, s[46:47]", "cp")
    a(f"v_lshrrev_b32 v16, 6, v0\nv_and_b32 v1, 63, v0\ns_and_b32 {sX}, s2, 7\nv_readfirstlane_b32 {sW}, v16\nv_lshlrev_b32 v3, 4, v1")
    a(f"s_lshl_b32 s44, {sX}, 5\ns_add_u32 {sR}, s44, {sI}\ns_lshl_b32 s44, {sR}, 9\nv_lshl_add_u32 v46, v0, 1, s44")
    a(f"s_lshl_b32 s44, {sI}, 5\ns_add_u32 s44, s44, {sX}\ns_lshl_b32 s44, s44, 11\nv_lshl_add_u32 v47, v16, 14, v3\nv_add_u32 v47, s44, v47\ns_lshl_b32 s44, {sR}, 2")
    a("s_waitcnt lgkmcnt(0)")
    stamp("karg")
    a(f"s_load_dword {sLDT}, s[14:15], s44")
    for i in range(4): a(f"global_load_ushort v{12+i}, v46, s[{6+2*i}:{7+2*i}] nt", "kp")
    a("global_load_dwordx4 v[4:7], v47, s[4:5] nt\nglobal_load_dwordx4 v[8:11], v47, s[4:5] offset:1024 nt", "xr")
    a(f"s_load_dword {sTAG}, s[32:33], {EPOCH}\ns_load_dword {sD}, s[16:17], s44\ns_load_dwordx2 s[28:29], s[0:1], 96")
    a(f"s_mul_i32 s45, {sW}, {RW}\ns_add_u32 s45, s45, {L_RED}\ns_mov_b32 m0, s45")
    a(f"s_lshr_b32 s44, {sI}, 2\ns_mul_i32 s44, s44, {(1<<17)-(1<<14)}\ns_lshr_b32 s64, {sW}, 1\ns_mul_i32 s64, s64, {(1<<20)-(1<<12)}\ns_add_u32 s44, s44, s64")
    a(f"s_lshl1_add_u32 s64, {sI}, {sW}\ns_lshl4_add_u32 s64, s64, {sX}\ns_lshl_b32 s64, s64, 7\ns_add_u32 s44, s44, s64")
    a("v_lshrrev_b32 v17, 3, v1\nv_xor_b32 v120, v1, v17\nv_and_b32 v120, 7, v120\nv_lshl_add_u32 v120, v120, 4, s44\nv_lshl_add_u32 v120, v17, 14, v120")
    a("global_load_lds_dwordx4 v120, s[4:5] nt\nglobal_load_lds_dwordx4 v120, s[4:5] offset:1024 nt", "xt")
    def xtaddr():
        a(f"s_lshl2_add_u32 s64, {sX}, {sW}\ns_mul_i32 s64, s64, {8*XS}\ns_and_b32 s65, {sI}, 3\ns_bfe_u32 s44, {sI}, 0x10002\ns_lshl1_add_u32 s65, s65, s44\ns_and_b32 s44, {sI}, 24\ns_add_u32 s65, s65, s44\ns_lshl_b32 s65, s65, 7\ns_add_u32 s64, s64, s65\ns_add_u32 s64, s64, {XT}")
        a(f"v_and_b32 v16, 0x70, v3\nv_mul_u32_u24 v99, {XS}, v17\nv_add3_u32 v99, v99, v16, s64")
    if OPT["touch"]:
        xtaddr()
        a("v_min_u32 v16, 23, v1\nv_lshl_add_u32 v16, v16, 12, s64")
        a("global_load_dword v101, v16, s[32:33]" + ("", "", " nt")[OPT["touch"]], "xt")
    stamp("i_xt")
    a(f"s_mul_i32 s66, {sR}, 3\ns_add_u32 s66, s66, {sW}\ns_cmp_eq_u32 {sW}, 3\ns_cselect_b32 s66, 1000, s66\ns_mul_i32 s67, s66, 1525\ns_lshr_b32 s67, s67, 16")
    a(f"s_mul_i32 s64, s67, 85312\ns_lshl_b32 s65, s66, 6\ns_add_u32 s64, s64, s65\ns_add_u32 m0, s45, 2048")
    a("s_mov_b32 s36, s20\ns_mov_b32 s37, s21\ns_mov_b32 s38, 1409024\ns_mov_b32 s39, 0x20000")
    a("v_lshrrev_b32 v122, 2, v1\nv_and_b32 v121, 48, v3\ns_movk_i32 s65, 2752\nv_mad_u32_u24 v123, v122, s65, v121")
    a(f"buffer_load_dwordx4 v123, {WJ}, s64 offen nt lds\ns_add_u32 s64, s64, {16*2752-1024}\nbuffer_load_dwordx4 v123, {WJ}, s64 offen offset:1024 nt lds", "w1j")
    a(f"s_and_b32 s64, {sI}, 3\ns_lshl_b32 s65, s64, 8\nv_and_b32 v124, 127, v0\nv_lshl_add_u32 v125, v124, 1, s65")
    a("global_load_ushort v19, v125, s[24:25]", "c")
    stamp("i_w1")
    a(f"s_lshl2_add_u32 s64, s64, {sW}\ns_mul_i32 s64, s64, {32*6144}\ns_lshr_b32 s65, {sI}, 2\ns_lshl3_add_u32 s65, s65, {sX}\ns_lshl_b32 s65, s65, 7\ns_add_u32 s64, s64, s65")
    a(f"s_cmp_lt_u32 {sI}, 24\ns_cselect_b32 s64, s64, {OOB}\ns_mov_b32 s36, s26\ns_mov_b32 s37, s27\ns_mov_b32 s38, 3145728\ns_add_u32 m0, s45, 6144")
    a("v_and_b32 v123, 6, v17\nv_xor_b32 v123, v123, v1\nv_and_b32 v123, 7, v123\nv_lshlrev_b32 v123, 4, v123\ns_movk_i32 s65, 6144\nv_mad_u32_u24 v123, v17, s65, v123")
    a("s_mov_b32 s19, s64\ns_add_u32 s18, s45, 4096")
    def wm_issue():
        for it in range(4):
            a(f"buffer_load_dwordx4 v123, {WJ}, s19 offen offset:{1024*it} nt lds", "wm")
            if it < 3: a(f"s_add_u32 s19, s19, {49152-1024}")
        stamp("i_wm")
    if OPT["wmpos"] == 0: wm_issue()
    a("v_and_b32 v18, 31, v0\nv_and_b32 v16, 64, v0\nv_lshl_add_u32 v18, v18, 1, v16\nv_add_u32 v18, L_tab-L_pc, v18")
    a(f"s_lshr_b32 s68, s66, 4\ns_and_b32 s69, s66, 15\ns_lshl_b32 s64, s68, 15\ns_lshl_b32 s65, s69, 6\ns_add_u32 s2, s64, s65\nv_lshl_add_u32 v122, v122, 10, v121")
    def w2_issue():
        a("s_mov_b32 s0, m0\ns_mov_b32 m0, s18\ns_mov_b32 s36, s22\ns_mov_b32 s37, s23\ns_mov_b32 s38, 1409024")
        a(f"buffer_load_dwordx4 v122, {WJ}, s2 offen nt lds\ns_add_u32 s2, s2, {16384-1024}\nbuffer_load_dwordx4 v122, {WJ}, s2 offen offset:1024 nt lds", "w2j")
        a("global_load_ushort v18, v18, s[46:47]", "tab")
        a("s_mov_b32 m0, s0")
        if OPT['htp'] == 0: htouch(160)
        stamp("i_w2")
    a("s_mov_b32 s34, 0x9000000\ns_mov_b32 s35, 0x20000\nv_and_b32 v16, 0x70, v3")
    for k in range(1, 11): a(f"s_movk_i32 {k4(k)}, {4096*k}" if k < 8 else f"s_mov_b32 {k4(k)}, {4096*k}")
    a(f"s_mov_b32 {sSPIN}, 100000")
    a(f"s_mul_i32 s20, s67, {(1024 - 43*32768) & 0xffffffff}\ns_lshl_b32 s64, s66, 15\ns_add_u32 s20, s20, s64\ns_add_u32 s20, s20, {W1T}")
    a(f"s_lshr_b32 s64, s69, 1\ns_mul_i32 s64, s64, 43\ns_add_u32 s64, s64, s68\ns_and_b32 s65, s69, 1\ns_lshl1_add_u32 s64, s64, s65\ns_lshl_b32 s64, s64, 11\ns_add_u32 s21, s64, {W2T}")
    a(f"s_mul_i32 s27, s67, {-21984 & 0xffffffff}\ns_lshl_b32 s64, s66, 9\ns_add_u32 s27, s27, s64\ns_add_u32 s27, s27, {FL1}")
    a(f"s_cmp_lt_u32 s66, 688\ns_cselect_b32 s20, s20, {OOB}\ns_cselect_b32 s21, s21, {OOB}\ns_cselect_b32 s27, s27, {OOB}")
    a(f"s_getreg_b32 s63, hwreg(HW_REG_XCC_ID, 0, 4)\ns_xor_b32 s63, s63, {sX}")
    if OPT['far']: a(f"s_and_b32 s63, {sI}, {OPT['far']}")
    a(f"s_lshr_b32 s64, {sI}, 4\ns_and_b32 s65, {sX}, 1\ns_lshl1_add_u32 s64, s64, s65\ns_bfe_u32 s65, {sI}, 0x20002\ns_lshl2_add_u32 s64, s64, s65\ns_lshr_b32 s65, {sX}, 1\ns_lshl2_add_u32 s64, s64, s65")
    a(f"s_and_b32 s65, {sI}, 3\ns_lshl2_add_u32 s64, s64, s65\ns_lshl2_add_u32 s64, s64, {sW}\ns_lshl4_add_u32 s1, s64, {k4(1)}")
    for i in range(4): a(f"v_mov_b32 v{76+i}, 0")
    a(f"v_lshrrev_b32 v80, 4, v1\nv_and_b32 v81, 15, v1\nv_mul_u32_u24 v82, {HPAR}, v80\nv_lshl_add_u32 v82, v81, 4, v82\nv_add_u32 v82, {L_H}, v82")
    a(f"v_mul_u32_u24 v83, {KCP}, v80\nv_and_b32 v84, 1, v1\nv_lshl_add_u32 v83, v84, 4, v83\nv_add_u32 v83, {L_K + 4096}, v83")
    a("ds_write_b128 v82, v[76:79]\nds_write_b128 v83, v[76:79]")
    a("v_and_b32 v82, 16, v1\nv_and_b32 v83, 32, v1\nv_lshl_add_u32 v46, v81, 4, s45\nv_lshl_add_u32 v46, v82, 5, v46\nv_lshl_add_u32 v46, v83, 3, v46")
    a(f"v_bfe_u32 v47, v1, 3, 2\nv_xor_b32 v47, {sW}, v47\nv_lshlrev_b32 v47, 5, v47\nv_lshl_add_u32 v47, v83, 6, v47\nv_and_b32 v85, 28, v1\nv_lshl_add_u32 v47, v85, 5, v47\nv_and_b32 v85, 3, v1\nv_lshl_add_u32 v47, v85, 3, v47\nv_add_u32 v47, {L_RED + 6144}, v47")
    a(f"v_and_b32 v85, 7, v1\nv_lshrrev_b32 v86, 5, v1\nv_lshl_add_u32 v86, {sW}, 1, v86\nv_xor_b32 v86, v86, v85\nv_lshlrev_b32 v86, 4, v86\nv_lshl_add_u32 v86, v85, 7, v86\nv_and_b32 v85, 3, v17\nv_lshl_add_u32 v86, v85, 2, v86\nv_add_u32 v120, {L_RED}, v86")
    a(f"v_lshrrev_b32 v85, 1, v124\nv_xor_b32 v85, v85, v124\nv_bfe_u32 v85, v85, 2, 1\nv_mul_u32_u24 v85, 12, v85\nv_xor_b32 v124, v124, v85\nv_lshlrev_b32 v124, 1, v124\nv_add_u32 v124, {L_SI}, v124")
    if not OPT['touch']: xtaddr()
    a(f"v_lshl_add_u32 v126, v80, 1, v84\nv_lshlrev_b32 v126, 4, v126\nv_lshlrev_b32 v127, 4, v80\nv_add_u32 v127, {L_SI}, v127")
    a(f"s_mul_i32 s24, {sX}, 12288\ns_add_u32 s24, s24, {MODP}\ns_lshl2_add_u32 s64, {sI}, {sW}\ns_lshl_b32 s64, s64, 7\ns_add_u32 s25, s24, s64\ns_cmp_lt_u32 {sI}, 24\ns_cselect_b32 s25, s25, {OOB}\ns_lshl4_add_u32 s24, {sI}, s24")
    if OPT["wmpos"] == 1: wm_issue()
    stamp("pre")
    a(f"s_waitcnt lgkmcnt(0)\ns_mul_i32 {sTAG}, {sTAG}, 0x9e3779b5\ns_add_u32 {sTAG}, {sTAG}, 0x7f4a7c15")
    a(f"s_lshl_b32 s44, {sLDT}, 16\ns_and_b32 s45, {sLDT}, 0xffff0000\ns_cmp_lt_u32 {sW}, 2\ns_cselect_b32 s44, s44, s45")
    a(f"s_lshl_b32 s64, {sD}, 16\ns_and_b32 s45, {sD}, 0xffff0000\ns_cmp_lt_u32 {sW}, 2\ns_cselect_b32 {sD}, s64, s45")
    a(f"v_mov_b32 v16, 0x3fb8aa3b\nv_mul_f32 v17, s44, v16\nv_mov_b32 v95, {sTAG}\nv_exp_f32 v17, v17")
    for r_ in (51, 55, 58, 59): a(f"v_mov_b32 v{r_}, {sTAG}")
    a(f"s_lshr_b32 s44, {sW}, 1\ns_mul_i32 s44, s44, {TCH}\ns_and_b32 s45, {sW}, 1\ns_lshl_b32 s64, s45, 8\ns_add_u32 m0, s44, s64")
    a("s_mov_b32 s64, 0x3f803f80\ns_mov_b32 s65, 0x3b000000")
    stamp("pre2")
    a.wvm("kp")
    stamp("kp")
    for i in range(4): a(f"v_lshlrev_b32 v{12+i}, 16, v{12+i}")
    a("v_mul_f32 v12, v16, v12\nv_exp_f32 v12, v12\nv_cvt_pk_bf16_f32 v17, v17, v12")
    a("v_and_b32 v12, 0xffff0000, v17\nv_lshlrev_b32 v17, 16, v17")
    a("v_mul_f32 v12, v12, v17\nv_mul_f32 v13, v13, v17\nv_add_f32 v17, v17, v17")
    a("v_mul_f32 v12, 0xbfb8aa3b, v12\nv_mul_f32 v13, 0.15915494, v13")
    Z1, Z8, Z16, Z256, G0 = 20, 22, 24, 26, 28
    a(f"v_mul_f32 v{G0}, v14, v17\nv_mul_f32 v{G0+1}, v15, -v17")
    st = []
    for i, (pc, z, cj) in enumerate((("1.0", Z1, 1), ("0x41000000", Z8, 0), ("0x41800000", Z16, 0), ("0x43800000", Z256, 1))):
        t = 104 + 2 * i
        st.append([f"v_mul_f32 v{t}, {pc}, v12", f"v_mul_f32 v{t+1}, {pc}, v13", f"v_exp_f32 v{t}, v{t}", f"v_fract_f32 v{t+1}, v{t+1}",
                   f"v_cos_f32 v{z}, v{t+1}", f"v_sin_f32 v{z+1}, v{t+1}", f"v_mul_f32 v{z}, v{z}, v{t}",
                   f"v_mul_f32 v{z+1}, v{z+1}, {'-' if cj else ''}v{t}"])
    run(merge(st))
    def cmul(d, x, m, t):
        return [f"v_pk_mul_f32 {v(t,2)}, {v(x,2)}, {v(m,2)} op_sel:[0,0] op_sel_hi:[0,1]",
                f"v_pk_fma_f32 {v(d,2)}, {v(x,2)}, {v(m,2)}, {v(t,2)} op_sel:[1,1,0] op_sel_hi:[1,0,1] neg_lo:[0,1,0]"]
    def put(x, t, row): return [f"v_cvt_pk_bf16_f32 v{t}, v{x}, v{x+1}", f"ds_write_addtid_b32 v{t} offset:{row*TROW}"]
    grow = lambda e: 32 + GEXP.index(e)
    sE = ["v_mov_b32 v112, 0x3f80", "ds_write_addtid_b32 v112 offset:0"] + put(Z16, 113, 2)
    src = Z16
    for f in range(4, 32, 2): sE += cmul(30, src, Z16, 104) + put(30, 112 + (f >> 1 & 1), f); src = 30
    sO = put(Z8, 114, 1); src = Z8
    for f in range(3, 32, 2): sO += cmul(32, src, Z16, 106) + put(32, 114 + (f >> 1 & 1), f); src = 32
    keep = {2: 34, 4: 36, 6: 38, 8: 40}
    sXx = []; src = G0
    for e in range(1, 9):
        d = keep.get(e, 42); sXx += cmul(d, src, Z1, 108) + put(d, 116 + (e & 1), grow(e)); src = d
    for k in range(1, 8): sXx += cmul(40, 40, Z256, 108) + put(40, 116 + (k & 1), grow(256 * k + 8))
    sY = put(G0, 118, grow(0)); src = G0
    for k in range(1, 8): sY += cmul(44, src, Z256, 110) + put(44, 118 + (k & 1), grow(256 * k)); src = 44
    sY += cmul(34, 34, Z256, 110) + put(34, 118, grow(258)) + cmul(38, 38, Z256, 110) + put(38, 119, grow(262))
    for k in range(1, 4): sY += cmul(36, 36, Z256, 110) + put(36, 118 + (k & 1 ^ 1), grow(256 * k + 4))
    CH = merge([sE, sO, sXx, sY])
    a.wvm("xr")
    stamp("xrows")
    if OPT["pI2"] < 0: w2_issue()
    for i in range(4):
        for (d, x, y) in ((88, 4 + i, None), (89, 4 + i, 4 + i), (90, 8 + i, None), (91, 8 + i, 8 + i)):
            a(f"v_dot2_f32_bf16 v{d}, v{x}, {'s64' if y is None else v(y)}, {0 if i == 0 else v(d)}")
    S = ["v_permlane32_swap_b32 v88, v90\nv_permlane32_swap_b32 v89, v91\nv_add_f32 v88, v88, v90\nv_add_f32 v89, v89, v91",
         "v_permlane16_swap_b32 v88, v89\nv_add_f32 v88, v88, v89"]
    S += [f"v_add_f32_dpp v88, v88, v88 row_ror:{sh} row_mask:0xf bank_mask:0xf" for sh in (8, 4, 2)]
    S += ["v_add_f32_dpp v88, v88, v88 row_ror:1 row_mask:0xf bank_mask:0xf\nv_mul_f32 v88, s65, v88\nv_mov_b32 v89, v88",
          "v_permlane16_swap_b32 v88, v89\nv_fma_f32 v89, -v88, v88, v89\nv_max_f32 v89, 0, v89\nv_mov_b32 v90, v88\n"
          "v_cvt_pk_bf16_f32 v89, v89, v89\nv_lshlrev_b32 v89, 16, v89\nv_add_f32 v89, 0x3727c5ac, v89\nv_permlane32_swap_b32 v88, v90\n"
          "v_cvt_pk_bf16_f32 v89, v89, v89\nv_lshlrev_b32 v89, 16, v89\nv_sqrt_f32 v89, v89\nv_cvt_pk_bf16_f32 v94, v88, v90\n"
          "v_cvt_pk_bf16_f32 v89, v89, v89\nv_lshlrev_b32 v89, 16, v89\nv_rcp_f32 v92, v89\nv_rcp_f32 v93, v89",
          "v_permlane32_swap_b32 v92, v93\ns_mov_b64 exec, 1"]
    for s_ in S:
        run(CH[:2]); CH = CH[2:]
        a(s_)
    a(f"buffer_store_dwordx4 v[92:95], v76, {WS}, s1 offen sc1", "st")
    a("s_mov_b64 exec, -1")
    stamp("stats")
    a.wvm("xt")
    a("s_barrier")
    so = lambda s_: 40 * (s_ >> 1) + 4 * (s_ & 1)
    for k in range(3):
        a(f"ds_read2st64_b32 {v(48+4*k,2)}, v120 offset0:{so(3*k)} offset1:{so(3*k+1)}", f"x{k}")
        if k < 2: a(f"ds_read_b32 v{50+4*k}, v120 offset:{256*so(3*k+2)}", f"x{k}")
    ins = {}
    XM = (' sc1', '', ' nt')[OPT['xtst']]
    def at(p, *items): ins.setdefault(min(p, len(CH)), []).extend(items)
    xst = "\n".join(f"buffer_store_dwordx4 {v(48+4*k,4)}, v99, {WS}, {k4(k)} offen" for k in range(3))
    at(8, lambda: a.nl("x2"), lambda: dstore(xst, "xst"), lambda: stamp("xtpub"))
    if OPT['xtt'] >= 0:
        at(OPT['xtt'], f"s_mul_i32 s66, {sR}, {XS}\ns_mul_i32 s67, {sW}, 3072\ns_add_u32 s66, s66, s67\ns_add_u32 s66, s66, {XT}\nv_min_u32 v14, 23, v1\nv_lshlrev_b32 v14, 7, v14",
           (f"buffer_load_dword v14, v14, {WS}, s66 offen sc1", "xtt"))
    at(OPT['pF'], lambda: a.nv("w1s"), "s_mov_b64 exec, 1", (f"buffer_store_dword v95, v76, {WS}, s27 offen sc1", "fl"), "s_mov_b64 exec, -1", lambda: stamp("flpub"))
    def wjob(p, nm, off, sd, step):
        at(p, lambda: a.wvm(nm + "j"), *[(f"ds_read_b64_tr_b16 {v(60+4*e+2*h,2)}, v46 offset:{off + 1024*h + 8*e}", nm + "t") for e in range(2) for h in range(2)])
        at(p + 10, lambda: a.nl(nm + "t"), (f"buffer_store_dwordx4 v[60:63], v3, {WS}, {sd} offen sc1\ns_add_u32 {sd}, {sd}, {step}\nbuffer_store_dwordx4 v[64:67], v3, {WS}, {sd} offen sc1", nm + "s"), lambda: stamp(nm + "pub"))
    wjob(8 + OPT["pW1"], "w1", 2048, "s20", 16384)
    p = 20 + OPT["pW1"]
    at(p, lambda: a.wvm("c"), "v_lshlrev_b32 v19, 16, v19\nv_mul_f32 v88, 0xbfb8aa3b, v19\nv_exp_f32 v88, v88")
    at(p + 1, "v_add_f32 v88, 1.0, v88\nv_rcp_f32 v88, v88")
    at(p + 2, "v_mul_f32 v88, v88, v19\nv_cvt_pk_bf16_f32 v88, v88, v88", ("ds_write_b16 v124, v88", "si"))
    at(OPT["pB"], lambda: a.wvm("wm"), lambda: a.nl("si"), lambda: stamp("wm"), "s_barrier")
    for ks in range(4):
        at(OPT["pB"] + ks, (f"ds_read_b64_tr_b16 {v(128+4*ks,2)}, v47 offset:{RW*ks}\nds_read_b64_tr_b16 {v(130+4*ks,2)}, v47 offset:{RW*ks+1024}\nds_read_b128 {v(144+4*ks,4)}, v127 offset:{64*ks}", f"m{ks}"))
        at(OPT["pB"] + 12 + 3 * ks, lambda ks=ks: a.nl(f"m{ks}"), f"v_mfma_f32_16x16x32_bf16 v[68:71], {v(128+4*ks,4)}, {v(144+4*ks,4)}, {0 if ks == 0 else 'v[68:71]'}")
    at(OPT["pB"] + 29, "s_mov_b32 vcc_lo, 0xaaaaaaaa\ns_mov_b32 vcc_hi, 0xaaaaaaaa\nv_cndmask_b32 v56, v68, v70, vcc\nv_cndmask_b32 v57, v69, v71, vcc\ns_mov_b32 exec_lo, 0x00030003\ns_mov_b32 exec_hi, 0x00030003",
       (f"buffer_store_dwordx4 v[56:59], v126, {WS}, s25 offen sc1", "mst"), "s_mov_b64 exec, -1", lambda: stamp("modpub"))
    if OPT["pI2"] >= 0: at(OPT["pI2"], w2_issue)
    wjob(OPT["pW2"], "w2", 4096, "s21", 1024)
    for i in range(len(CH) + 1):
        run(ins.get(i, []))
        if i < len(CH): a(CH[i])
    stamp("chend")
    a.nv("tab")
    a(f"v_and_b32 v21, 31, v1\nv_mul_u32_u24 v21, {TROW}, v21\nv_lshrrev_b32 v22, 5, v1\nv_lshl_add_u32 v22, v22, 4, s44\nv_add_u32 v21, v21, v22\nv_add_u32 v20, v18, v22")
    a(f"s_lshl_b32 s26, {sR}, 5\ns_add_u32 s26, s26, {FLAGS}\ns_cmp_eq_u32 {sW}, 3\ns_cselect_b32 s26, s26, {OOB}")
    if "a_st" in ONLY:
        a.nv("st"); stamp("a_st"); a.nv("xst"); stamp("a_xt"); a.nv("w1s"); stamp("a_w1")
    a("s_waitcnt lgkmcnt(0)\ns_barrier")
    KA, KB, KD = 128, 192, 104
    def rdk(s_): a(f"ds_read_b128 {v(KA+4*s_,4)}, v20 offset:{32*s_}\nds_read_b128 {v(KB+4*s_,4)}, v21 offset:{32*s_}", f"k{s_}")
    rdk(0)
    stamp("chains")
    for s_ in range(1, 6): rdk(s_)
    a(f"v_and_b32 v22, 31, v1\nv_lshrrev_b32 v23, 5, v1\nv_lshl_add_u32 v22, v23, 6, v22\nv_lshlrev_b32 v22, 4, v22")
    a(f"s_lshr_b32 s44, {sW}, 1\ns_mul_i32 s44, s44, {KCH}\ns_lshl_b32 s46, s45, 11\ns_sub_u32 s46, s44, s46\ns_add_u32 s46, s46, {L_K + 255*16 - 512}\nv_sub_u32 v22, s46, v22")
    a(f"s_cmp_eq_u32 s45, 0\ns_cselect_b32 s46, 0, 0xaaaaaaaa\ns_cselect_b32 s64, 1, 0\ns_mov_b32 s47, s46\ns_mov_b32 s65, 0")
    a(f"v_mov_b32 v24, {sD}\nv_cndmask_b32 v23, 0, v24, s[64:65]\ns_add_u32 s66, s44, {L_K + KCP + 4096}\nv_mov_b32 v24, s66")
    SW, XG, MP, FL = 72, 88, 100, 103
    sweep = [f"buffer_load_dwordx4 {v(XG+4*k,4)}, v17, {WS}, {k4(k)} offen sc1" for k in range(3)]
    sweep += [f"buffer_load_dwordx4 {v(SW+4*k,4)}, v25, {WS}, {k4(1+k)} offen sc1" for k in range(4)]
    sweep += [f"buffer_load_dwordx3 {v(MP,3)}, v16, {WS}, s24 offen sc1", f"buffer_load_dword v{FL}, v26, {WS}, {k4(6)} offen sc1"]
    fll1 = [f"buffer_load_dword v126, v124, {WS}, s69 offen sc1"]
    sweep.pop()
    if OPT['w1t'] != 1: sweep += fll1
    kf = [f"s_and_b32 s68, {sR}, 7\ns_mul_i32 s68, s68, 11\ns_min_u32 s68, s68, 76\ns_mul_i32 s69, {sW}, 3\ns_add_u32 s68, s68, s69\ns_lshr_b32 s69, s68, 1\ns_min_u32 s69, s69, 41\ns_lshl_b32 s69, s69, 9\ns_add_u32 s69, s69, {FL1}\nv_and_b32 v125, 31, v1\nv_lshlrev_b32 v124, 5, v125",
          f"s_mul_i32 s66, {sR}, {XS}\ns_add_u32 s66, s66, {XT}\ns_cmp_eq_u32 s63, 0\ns_cselect_b32 s66, s66, {STATS}\nv_lshlrev_b32 v25, 4, v0\nv_add_u32 v17, s66, v25\nv_lshlrev_b32 v26, 5, v0",
          "v_min_u32 v16, 23, v1\nv_lshlrev_b32 v16, 9, v16\nv_lshrrev_b32 v36, 2, v1\nv_cmp_eq_u32 vcc, 4, v36",
          "v_mov_b32 v37, 0x2b800000\nv_cndmask_b32 v37, 0, v37, vcc\nv_cmp_eq_u32 s[66:67], 1, v36\ns_or_b64 vcc, vcc, s[66:67]",
          "v_cndmask_b32 v36, 0, 1.0, vcc",
          f"v_lshrrev_b32 v28, 5, v1\nv_mul_u32_u24 v19, {HPAR}, v28\nv_and_b32 v27, 15, v1\nv_lshl_add_u32 v19, v27, 4, v19",
          f"v_bfe_u32 v29, v1, 4, 1\nv_lshl_add_u32 v19, v29, 3, v19\ns_lshl_b32 s66, {sW}, 8\ns_add_u32 s66, s66, {L_H + 15*16}\nv_add_u32 v19, s66, v19",
          f"v_add_u32 v27, v27, v28\nv_lshlrev_b32 v27, 4, v27\nv_mul_u32_u24 v29, {HPAR}, v29",
          f"s_lshr_b32 s66, {sW}, 1\ns_mul_i32 s66, s66, {HCH}\ns_lshl_b32 s67, s45, 7\ns_sub_u32 s66, s66, s67\ns_add_u32 s66, s66, {L_H + 14*16 - 96}\nv_add3_u32 v27, v27, v29, s66"]
    pf = [f"v_lshrrev_b32 v2, 3, v0\nv_lshlrev_b32 v2, 15, v2\nv_and_b32 v4, 0x70, v3\ns_lshl_b32 s66, {sR}, 7\ns_add_u32 s66, s66, {U}\nv_add3_u32 v2, v2, v4, s66",
          "v_mov_b32 v120, -1\nv_mov_b32 v121, -1\nv_mov_b32 v122, -1\nv_mov_b32 v123, -1\ns_mov_b32 s66, 0x100000",
          (f"buffer_store_dwordx4 v[120:123], v2, {WS}, 0 offen sc1\nbuffer_store_dwordx4 v[120:123], v2, {WS}, s66 offen sc1", "pf"),
          f"s_lshr_b32 s66, {sR}, 3\ns_lshl_b32 s66, s66, 12\ns_lshr_b32 s67, {sW}, 1\ns_lshl1_add_u32 s23, {sR}, s67\ns_lshl_b32 s23, s23, 8\ns_add_u32 s23, s23, s66\ns_lshl3_add_u32 s23, s45, s23\ns_add_u32 s23, s23, {PS}\n"
          "v_and_b32 v4, 0xf0, v3\nv_and_b32 v5, 16, v1\nv_lshl_add_u32 v4, v5, 8, v4",
          (f"s_mov_b32 exec_hi, 0\nbuffer_store_dwordx2 v[120:121], v4, {WS}, s23 offen sc1\ns_mov_b32 exec_hi, -1", "pf")]
    if OPT['nopf']: pf.pop(2)
    kf = kf[:3] + pf + kf[3:]
    assert len(kf) <= 16
    sq = list(sweep)
    for s_ in range(16):
        a.wl(f"k{s_}")
        a(f"v_mfma_f32_32x32x16_bf16 {v(KD,16)}, {v(KA+4*s_,4)}, {v(KB+4*s_,4)}, {0 if s_ == 0 else v(KD,16)}")
        if s_ + 6 < 16: rdk(s_ + 6)
        if kf: run([kf.pop(0)])
        if s_ == OPT['fls'] and OPT['w1t'] == 1: a(fll1[0], "fl1")
        if s_ >= OPT["sw"]:
            for l in sq[:2]: a(l, "sw")
            sq = sq[2:]
    stamp("kmf")
    a("v_and_b32 v20, 15, v1\nv_add_u32 v21, 1, v20\nv_lshrrev_b32 v21, 1, v21\nv_lshrrev_b32 v28, 4, v1\nv_lshlrev_b32 v28, 2, v28\nv_sub_u32 v21, v28, v21\nv_lshlrev_b32 v21, 2, v21")
    a(f"v_and_b32 v20, 1, v20\nv_mul_u32_u24 v20, {KCP}, v20\nv_sub_u32 v21, v21, v20")
    a(f"s_lshl_b32 s66, s45, 8\ns_sub_u32 s66, s44, s66\ns_add_u32 s66, s66, {L_K + KCP + 4*(1016 - 48 - 128)}\nv_add_u32 v20, s66, v21\nv_add_u32 v21, -1024, v20")
    if OPT["sw"] < 20:
        for l in sq: a(l, "sw")
        sq = []
    P0, P1 = KD, KD + 8
    a(f"v_add_f32 v{P0}, v{P0}, v23\nv_cndmask_b32 v{P0+4}, v{P0+4}, v{P0+5}, s[46:47]\nv_cndmask_b32 v{P1+4}, v{P1+4}, v{P1+5}, s[46:47]")
    t0 = [P0 + e for e in range(8)] + [P1 + 1]
    t1 = [P1, P1] + [P1 + e for e in range(2, 8)] + [P1 + 7]
    for i, (t, sh, off) in enumerate(((t0, 0, 512), (t0, 1, 512 + KCP), (t1, 0, 0), (t1, 1, KCP))):
        d = 40 + 4 * i
        for q in range(4): a(f"v_cvt_pk_bf16_f32 v{d+q}, v{t[7-2*q+sh]}, v{t[6-2*q+sh]}")
        a(f"ds_write_b128 v22, {v(d,4)} offset:{off}")
    a(f"v_cvt_pk_bf16_f32 v23, v{P0}, 0\ns_mov_b64 exec, s[64:65]\nds_write_b32 v24, v23\ns_mov_b64 exec, -1")
    for l in sq: a(l, "sw")
    a("s_waitcnt lgkmcnt(0)")
    for i in range(2, 4): a(f"v_add_u32 v{20+i}, {-1024*i}, v20")
    a("s_barrier")
    stamp("kgen")
    if stop == 1:
        dump_lds(L_K, 2 * KCH); return finish_kernel()
    def Afr(rho, aa, n=4, o=0): return ar(16 * rho + 4 * aa + o, n) if aa < 4 else v(192 + 32 * (rho & 1) + 4 * (aa - 4) + o, n)
    def Bfr(rho, b): return v(128 + 16 * rho + 4 * b, 4) if b < 4 else v(208 + 32 * (rho & 1) + 4 * (b - 4), 4)
    def rdA(rho, aa):
        o = 16 * (3 - rho) + 128 * (1 - (aa & 1))
        return [(f"ds_read2_b32 {Afr(rho,aa,2,2*h)}, v{20+(aa>>1)} offset0:{o+2*h} offset1:{o+2*h+1}", f"A{rho}_{aa}") for h in range(2)]
    def rdB(rho, b): return (f"ds_read_b128 {Bfr(rho,b)}, v27 offset:{256*b + 32*(3-rho)}", f"B{rho}_{b}")
    for rho in range(4):
        for aa in range(4): run(rdA(rho, aa))
    stamp("afr")
    a(f"v_lshrrev_b32 v127, 5, v1\nv_add_u32 v127, s68, v127\nv_min_u32 v127, 85, v127\nv_lshlrev_b32 v125, 7, v125\nv_lshl_add_u32 v127, v127, 14, v125")
    a(f"s_lshr_b32 s66, {sI}, 3\ns_lshl_b32 s66, s66, 12\ns_add_u32 s66, s66, {W1T}\ns_add_u32 s67, s68, 2\ns_min_u32 s67, s67, 85\ns_lshl_b32 s67, s67, 14\ns_add_u32 s67, s67, s66")
    if OPT['w1t'] == 1: poll(fll1, [f"v_cmp_ne_u32 vcc, {sTAG}, v126"], "fl1")
    stamp("flarr")
    def w1touch(): a(f"buffer_load_dword v127, v127, {WS}, s66 offen sc1\nbuffer_load_dword v125, v125, {WS}, s67 offen sc1", "tw")
    if OPT['w1t'] == 1: w1touch()
    poll(sweep, tagchk([XG + 3, XG + 7, XG + 11, SW + 3, SW + 7, SW + 11, SW + 15, MP + 2] + ([126] if OPT['w1t'] != 1 else []), 29), "sw")
    stamp("sync1")
    if OPT['w1t'] == 2: w1touch()
    a("s_cmp_lg_u32 s63, 0\ns_cbranch_scc1 L_gather\nL_gathered:")
    tail3.append(f"L_gather:\nv_and_b32 v28, 15, v0\nv_lshlrev_b32 v28, 14, v28\nv_and_b32 v29, 48, v0\nv_lshl_add_u32 v28, v29, 8, v28\ns_lshl_b32 s0, {sW}, 18\ns_lshl2_add_u32 s0, {sR}, s0\nv_add_u32 v28, s0, v28\nv_add_u32 v29, 0x100000, v28\n"
                 + "".join(f"global_load_dword v{XG+s_+s_//3}, v{28+(s_>>2)}, s[4:5] offset:{1024*(s_&3)}\n" for s_ in range(8)) + "s_waitcnt vmcnt(0)\ns_branch L_gathered")
    XF, HT = 56, 104
    M = [f"v_add_f32_dpp v{MP+e}, v{MP+e}, v{MP+e} quad_perm:{q} row_mask:0xf bank_mask:0xf" for q in ("[1,0,3,2]", "[2,3,0,1]") for e in range(2)]
    M += [f"v_cvt_pk_bf16_f32 v{MP+1}, v{MP}, v{MP+1}", f"v_lshlrev_b32 v{MP}, 16, v{MP+1}", f"v_and_b32 v{MP+1}, 0xffff0000, v{MP+1}"]
    M += [f"v_add_f32 v{MP+e}, v{MP+e}, v{c}" for c in (36, 37) for e in range(2)] + [f"v_cvt_pk_bf16_f32 v{MP}, v{MP}, v{MP+1}"]
    xs = [XG + s_ + s_ // 3 for s_ in range(8)]
    X = [f"v_lshlrev_b32 v{XF+2*j}, 16, v{xs[j]}\nv_and_b32 v{XF+2*j+1}, 0xffff0000, v{xs[j]}" for j in range(8)]
    X += [f"v_lshlrev_b32 v{40+2*i}, 16, v{SW+4*i+2}\nv_and_b32 v{41+2*i}, 0xffff0000, v{SW+4*i+2}" for i in range(4)]
    run(merge([M, X]))
    M = [f"v_readlane_b32 s{12+m}, v{MP}, {4*m}" for m in (0, 1, 2, 4, 3, 5)]
    X = [f"v_pk_add_f32 {v(HT+2*j,2)}, {v(XF+2*j,2)}, {v(40+2*(j>>1),2)} op_sel:[0,{j&1}] op_sel_hi:[1,{j&1}] neg_lo:[0,1] neg_hi:[0,1]" for j in range(8)]
    run(merge([M, X]))
    a("s_lshl_b32 s4, s13, 16\ns_and_b32 s5, s13, 0xffff0000\ns_lshl_b32 s6, s16, 16\ns_and_b32 s7, s16, 0xffff0000\ns_lshl_b32 s8, s12, 16\ns_and_b32 s9, s12, 0xffff0000\ns_lshl_b32 s10, s14, 16\ns_and_b32 s11, s14, 0xffff0000")
    a("v_mov_b32 v34, s8\nv_mov_b32 v35, s9")
    for j in range(8): a(f"v_pk_mul_f32 {v(HT+2*j,2)}, {v(HT+2*j,2)}, {v(SW+4*(j>>1),2)} op_sel:[0,{j&1}] op_sel_hi:[1,{j&1}]")
    for hf in range(2):
        for j in range(4 * hf, 4 * hf + 4): a(f"v_pk_fma_f32 {v(HT+2*j,2)}, {v(HT+2*j,2)}, s[4:5], v[34:35]")
        for c in range(2):
            for q in range(2): a(f"v_cvt_pk_bf16_f32 v{40+4*hf+2*c+q}, v{HT+8*hf+4*q+c}, v{HT+8*hf+4*q+2+c}")
            a(f"ds_write_b64 v19, {v(40+4*hf+2*c,2)} offset:{HCH*c + 1024*hf}")
    a(f"v_mov_b32 v28, s16\nv_mov_b32 v29, s15\nv_mov_b32 v30, s17\ns_getreg_b32 s0, hwreg(HW_REG_XCC_ID, 0, 4)\ns_xor_b32 s0, s0, {sTAG}\nv_mov_b32 v31, s0\nv_mov_b32 v15, {sTAG}\nv_mov_b32 v6, 0\ns_add_u32 s26, s26, {MODF - FLAGS}")
    a("s_waitcnt lgkmcnt(0)\ns_barrier")
    for b in range(4): a(*rdB(0, b))
    a("s_mov_b64 exec, 1")
    a(f"buffer_store_dwordx4 v[28:31], v6, {WS}, s26 offen sc1", "mf")
    a("s_mov_b64 exec, -1")
    if OPT['w1t'] == 3: w1touch()
    stamp("hgen")
    if stop == 2:
        dump_lds(L_H, 2 * HCH); return finish_kernel()
    ACC = 72; Y = 104
    for b in range(4): a(*rdB(1, b))
    sG, sJ, sH = "s44", "s45", "s27"
    a(f"s_lshr_b32 {sG}, {sR}, 3\ns_and_b32 {sJ}, {sR}, 7\ns_mul_i32 s46, {sJ}, 11\ns_cmp_eq_u32 {sJ}, 7\ns_cselect_b32 s46, 76, s46\ns_cmp_lt_u32 {sJ}, 6\ns_cselect_b32 s47, 11, 10\ns_add_u32 s47, s47, s46")
    a(f"s_mul_i32 s64, {sW}, 3\ns_add_u32 s46, s46, s64\ns_mul_i32 {sH}, {sG}, {HG}\ns_add_u32 {sH}, {sH}, {H}")
    a(f"s_and_b32 s64, {sG}, {3 if OPT['stag'] else 0}\ns_lshl_b32 s59, s64, 12")
    for q in range(1, 4): a(f"s_xor_b32 s{59+q}, s59, {k4(q)}")
    UQ = ["s4", "s5", "s8", "s9", "s12", "s13", "s14", "s15"]; SQ = ["s16", "s17", "s18", "s19", "s20", "s21", "s22", "s36", "s37", "s38", "s39"]
    def W1fr(ks, t): return ar(64 + 12 * ks + 4 * t, 4)
    w1loads = [(f"buffer_load_dwordx4 {W1fr(ks,t)}, v{8+t}, {WS}, s{59+(ks>>2)} offen offset:{1024*(ks&3)} sc1", f"w1_{ks}") for ks in range(16) for t in range(3)]
    for t in range(3): a(f"s_add_u32 s65, s46, {t}\ns_lshl_b32 s66, s65, 14\ns_add_u32 s66, s66, {W1T}\ns_cmp_lt_u32 s65, s47\ns_cselect_b32 s66, s66, {OOB}\nv_add_u32 v{8+t}, s66, v3")
    if OPT['oob'] & 1: a("v_mov_b32 v8, s34\nv_mov_b32 v9, s34\nv_mov_b32 v10, s34")
    mf = []
    def order(pairs):
        by = {}
        for p in pairs: by.setdefault(p[0] + p[1], []).append(p)
        out = []; last = None
        while any(by.values()):
            k = max((k for k in by if by[k] and (k != last or sum(1 for q in by if by[q]) == 1)), key=lambda k: len(by[k]))
            out.append(by[k].pop(0)); last = k
        return out
    seen = set()
    for stg in range(2):
        for rho in range(4):
            if stg == 0: o = order([(aa, b) for b in range(4) for aa in range(4 - b)])
            else:
                o = order([(aa, b) for aa in range(4) for b in range(4) if aa + b >= 4]) + order([(aa, b) for b in range(8) for aa in range(8 - b) if max(aa, b) >= 4])
                if rho == 3:
                    by = {k: [p for p in o if p[0] + p[1] == k] for k in range(4, 8)}
                    o = [by[k].pop(0) for k in [5, 4] * 5 + [7, 5] + [6, 7] * 7]
            for aa, b in o:
                nt = aa + b; d = v(ACC + 4 * nt, 4)
                mf.append((f"v_mfma_f32_16x16x32_bf16 {d}, {Afr(rho,aa)}, {Bfr(rho,b)}, {d if nt in seen else 0}", [f"A{rho}_{aa}", f"B{rho}_{b}"], nt)); seen.add(nt)
    fl = {}
    def fat(p, *items): fl.setdefault(p, []).extend(items)
    def stream(rho): return [x for e in range(4, 8) for x in rdA(rho, e) + [rdB(rho, e)]]
    for i, x in enumerate([rdB(r_, b) for r_ in (2, 3) for b in range(4)] + stream(0) + stream(1)): fat(i, x)
    for r_, p in ((2, 66), (3, 92)):
        for i, x in enumerate(stream(r_)): fat(p + i, x)
    V = ["v_and_b32 v4, 31, v1", "v_lshlrev_b32 v4, 4, v4", "v_lshrrev_b32 v5, 5, v1", "v_lshl_add_u32 v4, v5, 10, v4"]
    for t in range(3):
        V += [f"s_add_u32 s65, s46, {t}\ns_lshr_b32 s67, s65, 1\ns_lshl_b32 s67, s67, 12\ns_and_b32 s68, s65, 1", f"s_lshl_b32 s68, s68, 9\ns_add_u32 s67, s67, s68\ns_add_u32 s67, s67, {sH}",
              f"s_cmp_lt_u32 s65, s47\ns_cselect_b32 s67, s67, {OOB}\nv_add_u32 v{12+t}, s67, v4"]
    V += []
    nV = len(V)
    V += [f"s_lshl_b32 s66, {sW}, 12\ns_add_u32 s66, s66, {L_RED}\nv_add_u32 v24, s66, v3", f"s_lshl_b32 s66, {sW}, 10\ns_add_u32 s66, s66, {L_RED}\nv_add_u32 v25, s66, v3"]
    V += ["v_mov_b32 v32, s10", "v_mov_b32 v33, s11", "v_mul_f32 v32, s6, v32", "v_mul_f32 v33, s7, v33"]
    V += [f"v_mul_f32 v{XF+i}, s{6+(i&1)}, v{XF+i}" for i in range(16)]
    for i, x in enumerate(V): fat(i, x)
    assert len(V) <= 40
    fat(0, f"s_or_b32 s69, {sR}, {sW}\ns_cmp_eq_u32 s69, 0\ns_cselect_b32 s69, 0, {OOB}", (f"buffer_store_dword v15, v6, {WS}, s69 offen sc1", "ep"))
    if OPT['ht'] == 1:
        fat(nV, "v_lshrrev_b32 v5, 4, v1\nv_add_u32 v5, s46, v5\ns_sub_u32 s65, s47, 1\nv_min_u32 v5, s65, v5")
        fat(nV + 1, f"v_and_b32 v7, 1, v5\nv_lshrrev_b32 v5, 1, v5\nv_lshl_add_u32 v5, v5, 3, v7\nv_lshl_add_u32 v5, v5, 9, {sH}")
        fat(nV + 2, "v_and_b32 v7, 12, v1\nv_lshl_add_u32 v5, v7, 8, v5\nv_and_b32 v7, 3, v1\nv_lshl_add_u32 v5, v7, 7, v5")
        fat(nV + 3, (f"buffer_load_dword v120, v5, {WS}, 0 offen", "hpf"))
    for i in range(0): fat(nV + 2 * i, (f"buffer_store_dwordx4 v[120:123], v{12+(i>>1)}, {WS}, 0 offen offset:{2048*(i&1)} sc1", "hpf"))
    NW = OPT["nw1c"]
    for i in range(NW): fat(OPT['w1s'] + (i * (OPT['w1e'] - OPT['w1s'])) // NW, w1loads[i])
    def lastuse(nt): return max(i for i, m in enumerate(mf) if m[2] == nt)
    for nt in range(8): fat(min(lastuse(nt) + 4, 144), (f"ds_write_b128 v24, {v(ACC+4*nt,4)} offset:{16384*(nt>>2) + 1024*(nt&3)}", f"rw{nt>>2}"))
    def fin(hf):
        L = [[(f"ds_read_b128 {v(Y+4*s_,4)}, v25 offset:{16384*hf + 4096*s_}", f"y{hf}_{s_}") for s_ in range(4)]]
        F = []
        for c in range(2):
            for kh in range(2):
                F.append(lambda c=c, kh=kh: a.nl(f"y{hf}_{2*c+kh}"))
                F += [f"v_fma_f32 v{XF+8*hf+2*r_+c}, v{Y+8*c+4*kh+r_}, v{32+c}, v{XF+8*hf+2*r_+c}" for r_ in range(4)]
            F += [f"v_cvt_pk_bf16_f32 v{40+2*c+q}, v{XF+8*hf+4*q+c}, v{XF+8*hf+4*q+2+c}" for q in range(2)]
        F += [(f"buffer_store_dwordx4 v[40:43], v2, {WS}, {'s69' if hf else 0} offen sc1", f"ust{hf}"), lambda: stamp(f"u{hf}pub")]
        return L[0], F
    rd, F = fin(0)
    fat(46, lambda: a.nl("rw0"), "s_barrier", *rd)
    p = 50; n = 0
    for x in F:
        fat(p, x)
        if not callable(x):
            n += 1
            if n % 2 == 0: p += 1
    mfl = [f"buffer_load_dwordx4 v[52:55], v26, {WS}, {k4(8)} offen sc1"]
    fat(OPT.get("mfp", 80), (mfl[0], "mfl"))
    fat(min(104, OPT['mpp'] - 1), f"s_lshr_b32 s66, s59, 4\nv_lshlrev_b32 v19, 2, v0\nv_xor_b32 v19, s66, v19\nv_add_u32 v19, {L_MOD}, v19\ns_mov_b32 s69, {1<<20}")
    fat(OPT['mpp'], lambda: poll(mfl, [f"v_xor_b32 v7, {sTAG}, v55", "v_cmp_lt_u32 vcc, 15, v7"], "mfl"), "ds_write2st64_b32 v19, v52, v53 offset0:0 offset1:4\nds_write2st64_b32 v19, v54, v55 offset0:8 offset1:12")
    if OPT['w2t'] >= 0: fat(OPT['mpp'] + OPT['w2t'], *touch(W2T, 124))
    V = [f"s_lshl_b32 s66, {sG}, 15\ns_add_u32 s66, s66, {U}\nv_lshl_add_u32 v16, v0, 4, s66", "v_and_b32 v4, 32, v1", "v_lshlrev_b32 v18, 4, v0", "v_lshlrev_b32 v5, 1, v4", "v_xor_b32 v18, v18, v5",
         "v_and_b32 v5, 16, v1", "v_mul_u32_u24 v28, 36, v5", "v_and_b32 v7, 8, v1", "v_lshl_add_u32 v28, v7, 4, v28", "v_and_b32 v7, 48, v3", "v_add_u32 v28, v28, v7", "v_and_b32 v7, 4, v1", "v_lshl_add_u32 v28, v7, 1, v28",
         f"s_lshr_b32 s66, {sW}, 1\ns_lshl1_add_u32 s66, {sJ}, s66\ns_lshl_b32 s67, s66, 11\nv_lshl_add_u32 v30, v4, 5, v28", f"s_and_b32 s68, {sW}, 1\ns_lshl_b32 s68, s68, 6\ns_or_b32 s67, s67, s68\ns_xor_b32 s67, s67, s4\nv_xor_b32 v30, s67, v30",
         "v_lshl_add_u32 v28, v4, 3, v28", "v_xor_b32 v29, 64, v28",
         "v_lshrrev_b32 v4, 2, v4", "v_and_b32 v7, 1, v1", "v_lshl_add_u32 v34, v7, 10, v4", f"v_add_u32 v5, {L_MOD}, v5", "v_add_u32 v34, v34, v5",
         f"s_lshl_b32 s66, s66, 6\ns_lshr_b32 s67, s59, 4\ns_xor_b32 s66, s66, s67\ns_add_u32 s66, s66, {L_MOD}\nv_and_b32 v35, 48, v1", "v_add_u32 v35, s66, v35"]
    V += [f"s_lshl_b32 s66, {sG}, 5\ns_xor_b32 s66, s66, s67\ns_add_u32 s66, s66, {L_MOD + 3072}\nv_and_b32 v31, 7, v1", "v_lshlrev_b32 v31, 2, v31", "v_add_u32 v11, s66, v31"]
    for i, x in enumerate(V): fat(106 + i, x)
    T = ["s_lshl_b32 s4, s59, 1\ns_mul_i32 s16, s59, 3"] + [f"s_xor_b32 {UQ[i]}, s4, {k4(i)}" for i in range(1, 8)]
    T += [f"s_add_u32 {SQ[i]}, {SQ[i-1]}, {k4(1)}\ns_cmp_gt_u32 {SQ[i]}, {k4(10)}\ns_cselect_b32 {SQ[i]}, 0, {SQ[i]}" for i in range(1, 11)]
    T += [f"s_cmp_eq_u32 {sW}, 3\ns_cselect_b32 s66, {k4(10)}, -1"] + [f"s_cmp_eq_u32 {SQ[i]}, s66\ns_cselect_b32 {SQ[i]}, {OOB}, {SQ[i]}" for i in (1, 4, 7, 10)]
    for i, x in enumerate(T): fat(62 + i if i < 4 else 74 + i, x)
    for i, m in enumerate(mf):
        for t in m[1]: a.nl(t)
        a(m[0]); run(fl.get(i, []))
    run(fl.get(144, []))
    a("s_waitcnt lgkmcnt(0)\ns_barrier")
    stamp("conv")
    rd, F = fin(1)
    run(rd)
    UST = 224
    ul = [[f"buffer_load_dwordx4 {v(UST+4*i,4)}, v{16+hf}, {WS}, {UQ[i]} offen sc1" for i in range(8)] for hf in range(2)]
    if OPT.get("u0early", 0):
        for l in ul[0]: a(l, "u0")
    run(F)
    if stop == 3: return finish_kernel()
    if not OPT.get("u0early", 0):
        for l in ul[0]: a(l, "u0")
    if OPT['htp'] == 1: htouch(120)
    CS, TT, CT, A1, B1, XR, RC, PSR, TM = 36, 48, 20, 60, 84, 100, 20, 124, 140
    CT = 144
    MT = 156
    def rdM(ks): return (f"ds_read2_b64 {v(MT+4*ks,4)}, v34 offset0:{8*ks} offset1:{8*ks+4}", f"mt{ks}")
    a(f"ds_read_b128 {v(TM,4)}, v35\nds_read_b32 v11, v11", "ctab")
    a(f"s_lshl_b32 s26, {sG}, 8\ns_add_u32 s26, s26, {HFL}\nv_and_b32 v4, 1, v1\nv_lshlrev_b32 v4, 7, v4\nv_and_b32 v5, 2, v1\nv_lshl_add_u32 v5, v5, 11, v4\ns_mov_b64 exec, 15")
    a(f"buffer_load_dword v121, v5, {WS}, s23 offen sc1\nbuffer_load_dword v122, v4, {WS}, s26 offen sc1", "tch")
    a(f"s_mov_b64 exec, -1\ns_lshl2_add_u32 s66, {sJ}, {sW}\ns_lshl2_add_u32 s1, s66, s26\ns_lshl_b32 s66, {sW}, 5\ns_add_u32 s26, s26, s66")
    for ks in range(16): a(*rdM(ks))
    w1q = w1loads[NW:]
    a(f"v_add_u32 v17, s69, v16\nv_and_b32 v19, 0xf0, v3\ns_lshl_b32 s24, {sG}, 13\ns_add_u32 s24, s24, {PS}")
    a(f"s_mul_i32 s66, {sJ}, 43\ns_mul_i32 s67, {sW}, 11\ns_add_u32 s66, s66, s67\ns_lshl_b32 s66, s66, 12\ns_add_u32 s66, s66, {W2T}\ns_lshr_b32 s68, {sW}, 1\ns_lshl_b32 s68, s68, 11\ns_or_b32 s66, s66, s68")
    a(f"v_add_u32 v5, s66, v3\nv_xor_b32 v4, 0x800, v5\ns_lshl_b32 s67, s67, 12\ns_add_u32 s67, s67, {sH}\ns_and_b32 s68, {sW}, 1\ns_lshl_b32 s68, s68, 10\ns_or_b32 s67, s67, s68\nv_add_u32 v7, s67, v3\nv_xor_b32 v6, 0x400, v7")
    if OPT['oob'] & 2: a("v_mov_b32 v4, s34\nv_mov_b32 v5, s34")
    if OPT['oob'] & 4: a("v_mov_b32 v6, s34\nv_mov_b32 v7, s34")
    ks11 = lambda s_: SQ[s_]
    def W2fr(s_, b, e):
        f = 4 * s_ + 2 * b + e
        return ar(4 * f, 4) if f < 16 else v(144 + 4 * (f - 16), 4)
    w2q = [(f"buffer_load_dwordx4 {W2fr(s_,b,e)}, v{4+b}, {WS}, {ks11(s_)} offen offset:{1024*e} sc1", f"w2_{s_}") for s_ in range(11) for b in range(2) for e in range(2)]
    def cst(ks):
        a.nl(f"mt{ks}"); a.nv(f"w1_{ks}")
        for t in range(3): a(f"v_mfma_f32_16x16x32_bf16 {v(CT+4*t,4)}, {W1fr(ks,t)}, {v(MT+4*ks,4)}, {0 if ks == 0 else v(CT+4*t,4)}")
    NCS = OPT["ncs"]
    a.nl("ctab")
    a("v_cmp_ne_u32 vcc, s0, v11\ns_mov_b32 s63, vcc_lo" if OPT["loc"] else "s_mov_b32 s63, 1")
    V = [f"v_lshlrev_b32 v{RC+2*i}, 16, v{TM+i}\nv_and_b32 v{RC+2*i+1}, 0xffff0000, v{TM+i}\nv_rcp_f32 v{RC+2*i}, v{RC+2*i}\nv_rcp_f32 v{RC+2*i+1}, v{RC+2*i+1}" for i in range(4)]
    for ks in range(NCS):
        for l in w1q[:3]: a(*l)
        w1q = w1q[3:]
        cst(ks)
        if V: a(V.pop(0))
    run(V); run(w1q)
    def rdU(hf, ks, rt): return (f"ds_read_b64_tr_b16 {v(B1+8*(ks&1)+4*rt,2)}, v{28+rt} offset:{32768*hf+2048*ks}\nds_read_b64_tr_b16 {v(B1+8*(ks&1)+4*rt+2,2)}, v{28+rt} offset:{32768*hf+2048*ks+1024}", f"U{hf}_{ks}_{rt}")
    def ustage(hf):
        for c in range(2):
            poll(ul[hf][4*c:4*c+4], sent([UST + 16 * c + 4 * i for i in range(4)], 11), f"u{hf}") if False else None
        poll(ul[hf], sent([UST + 4 * i for i in range(8)], 11), f"u{hf}")
        for i in range(8): a(f"ds_write_b128 v18, {v(UST+4*i,4)} offset:{32768*hf + 4096*i}")
        a("s_waitcnt lgkmcnt(0)\ns_barrier")
        stamp(f"u{hf}arr")
        for e in range(2): a(f"ds_read_b64_tr_b16 {v(TM+2*e,2)}, v30 offset:{32768*hf + 256*e}", "xres")
        for rt in range(2): a(*rdU(hf, 0, rt))
        x = XR + 8 * hf
        a.nl("xres")
        for i in range(4): a(f"v_lshlrev_b32 v{x+2*i}, 16, v{TM+i}\nv_and_b32 v{x+2*i+1}, 0xffff0000, v{TM+i}")
        for i in range(4): a(f"v_pk_mul_f32 {v(x+2*i,2)}, {v(x+2*i,2)}, {v(RC+2*i,2)}")
        a(f"v_pk_add_f32 {v(TM,2)}, {v(x,2)}, {v(x+2,2)}\nv_pk_mul_f32 {v(TM+2,2)}, {v(x,2)}, {v(x,2)}")
        for i in range(1, 4):
            if i > 1: a(f"v_pk_add_f32 {v(TM,2)}, {v(TM,2)}, {v(x+2*i,2)}")
            a(f"v_pk_fma_f32 {v(TM+2,2)}, {v(x+2*i,2)}, {v(x+2*i,2)}, {v(TM+2,2)}")
        a(f"v_add_f32 v{TM}, v{TM}, v{TM+1}\nv_add_f32 v{TM+1}, v{TM+2}, v{TM+3}")
        p_, q_ = TM, TM + 1
        a(f"v_permlane32_swap_b32 v{p_}, v{q_}\nv_add_f32 v{p_}, v{p_}, v{q_}\nv_mov_b32 v{q_}, v{p_}\nv_permlane16_swap_b32 v{p_}, v{q_}\nv_add_f32 v{p_}, v{p_}, v{q_}\nv_mov_b32 v{q_}, v{p_}\nv_permlane32_swap_b32 v{p_}, v{q_}")
        a("s_mov_b64 exec, 0xffff")
        dstore(f"buffer_store_dwordx2 {v(TM,2)}, v19, {WS}, s23 offen", f"pst{hf}")
        a(f"s_mov_b64 exec, -1\ns_add_u32 s23, s23, 4096")
    psl = [[f"buffer_load_dwordx4 {v(PSR+4*i,4)}, v3, {WS}, {'s25' if hf else 's24'} offen offset:{1024*i} sc1" for i in range(4)] for hf in range(2)]
    def Hfr(hf, s_, aa, n=4): return ar(64 + 96 * hf + 44 * aa + 4 * s_, n)
    hl = [[[f"buffer_load_dwordx4 {Hfr(hf,s_,aa)}, v{6+aa}, {WS}, {ks11(s_)} offen offset:{2048*hf} sc1" for s_ in range(11)] for aa in range(2)] for hf in range(2)]
    def gemm1(hf, fills):
        for ks in range(16):
            f = list(fills.get(ks, []))
            if hf == 0 and ks >= NCS: cst(ks)
            for rt in range(2):
                a.nl(f"U{hf}_{ks}_{rt}")
                for t in range(3):
                    d = v(A1 + 8 * t + 4 * rt, 4)
                    a(f"v_mfma_f32_16x16x32_bf16 {d}, {W1fr(ks,t)}, {v(B1+8*(ks&1)+4*rt,4)}, {0 if ks == 0 else d}")
                    if t == 0 and ks < 15: a(*rdU(hf, ks + 1, rt))
                    elif f: run([f.pop(0)])
            run(f)
    def epi1(hf):
        poll(psl[hf], sent([PSR + 2 * i for i in range(8)], 11), f"ps{hf}")
        P = PSR
        for m in (4, 2):
            for i in range(m): a(f"v_pk_add_f32 {v(P+2*i,2)}, {v(P+2*i,2)}, {v(P+2*i+2*m,2)}")
        a(f"v_permlane32_swap_b32 v{P}, v{P+2}\nv_permlane32_swap_b32 v{P+1}, v{P+3}\nv_pk_add_f32 {v(P,2)}, {v(P,2)}, {v(P+2,2)}")
        a(f"v_permlane16_swap_b32 v{P}, v{P+1}\nv_add_f32 v{P}, v{P}, v{P+1}\nv_mul_f32 v{P}, 0x3b000000, v{P}\nv_mov_b32 v{P+1}, v{P}\nv_permlane16_swap_b32 v{P}, v{P+1}")
        m_, r_ = P, P + 1
        a(f"v_fma_f32 v{r_}, -v{m_}, v{m_}, v{r_}\nv_max_f32 v{r_}, 0, v{r_}")
        a(f"v_cvt_pk_bf16_f32 v{r_}, v{r_}, v{m_}\nv_and_b32 v{m_}, 0xffff0000, v{r_}\nv_and_b32 v{P+2}, 0xffff0000, v{r_}\nv_lshlrev_b32 v{r_}, 16, v{r_}\nv_add_f32 v{r_}, 0x3727c5ac, v{r_}")
        a(f"v_cvt_pk_bf16_f32 v{r_}, v{r_}, v{r_}\nv_permlane32_swap_b32 v{m_}, v{P+2}\nv_lshlrev_b32 v{r_}, 16, v{r_}\nv_sqrt_f32 v{r_}, v{r_}")
        E1 = [f"v_pk_fma_f32 {v(A1+8*t+4*rt+2*q,2)}, {v(CS+4*t+2*q,2)}, {v(P+2*rt,2)}, {v(A1+8*t+4*rt+2*q,2)} op_sel:[0,0,0] op_sel_hi:[1,0,1] neg_lo:[0,1,0] neg_hi:[0,1,0]" for t in range(3) for rt in range(2) for q in range(2)]
        a(E1.pop(0))
        a(f"v_cvt_pk_bf16_f32 v{r_}, v{r_}, v{r_}\nv_lshlrev_b32 v{r_}, 16, v{r_}\nv_rcp_f32 v{P+3}, v{r_}\nv_rcp_f32 v{r_}, v{r_}")
        run(E1[:3]); E1 = E1[3:]
        a(f"v_permlane32_swap_b32 v{r_}, v{P+3}")
        for t in range(3):
            o = P + 4 + 4 * t
            for rt in range(2):
                for q in range(2):
                    d = v(A1 + 8 * t + 4 * rt + 2 * q, 2)
                    a(f"v_pk_fma_f32 {d}, {d}, {v(P+2*rt,2)}, {v(TT+4*t+2*q,2)} op_sel:[0,1,0] op_sel_hi:[1,1,1]")
            for i in range(4): a(f"v_cvt_pk_bf16_f32 v{o+i}, v{A1+8*t+2*i}, v{A1+8*t+2*i+1}")
            for i in (0, 2, 1, 3): a(f"v_pk_max_i16 v{o+i}, v{o+i}, 0")
            run(E1[:2])
            a(f"v_permlane32_swap_b32 v{o}, v{o+2}\nv_permlane32_swap_b32 v{o+1}, v{o+3}")
            dstore(f"buffer_store_dwordx4 {v(o,4)}, v{12+t}, {WS}, 0 offen offset:{2048*hf}", f"hst{hf}")
            run(E1[2:4]); E1 = E1[4:]
        stamp(f"h{hf}pub")
    def hflag(hf):
        a.nv(f"hst{hf}"); a("s_mov_b64 exec, 1")
        dstore(f"buffer_store_dword v15, v31, {WS}, s1 offen offset:{128*hf}", f"hf{hf}")
        a("s_mov_b64 exec, -1"); stamp(f"f{hf}pub")
    fll = [f"buffer_load_dword v123, v31, {WS}, s26 offen offset:{128*hf} sc1" for hf in range(2)]
    def hcheck(hf): poll([fll[hf]], [f"v_cmp_ne_u32 vcc, {sTAG}, v123"], f"fl{hf}"); stamp(f"f{hf}arr")
    def spread(fills, items, k0, k1):
        for i, x in enumerate(items): fills.setdefault(k0 + (i * (k1 - k0)) // len(items), []).append(x)
    split = [f"v_mov_b32_dpp v{CS+i}, v{CT+i} quad_perm:[0,0,2,2] row_mask:0xf bank_mask:0xf\nv_mov_b32_dpp v{TT+i}, v{CT+i} quad_perm:[1,1,3,3] row_mask:0xf bank_mask:0xf" for i in range(12)]
    ustage(0)
    a("s_add_u32 s25, s24, 4096")
    f = {}
    spread(f, [(l, "u1") for l in ul[1]], OPT["u1ks"], OPT["u1ks"] + 2)
    spread(f, [(l, "ps0") for l in psl[0]], OPT["ps0ks"], OPT["ps0ks"] + 1)
    spread(f, w2q[:16], OPT["u1ks"] + 2, 16); w2q = w2q[16:]
    gemm1(0, f)
    stamp("g1a")
    run(split)
    if OPT["ord"] == 0:
        epi1(0); run(w2q[:8]); w2q = w2q[8:]; ustage(1)
    else:
        run(w2q[:8]); w2q = w2q[8:]; ustage(1); epi1(0)
    f = {}
    f[OPT["f0ks"]] = [lambda: hflag(0)]
    f[OPT["p0ks"]] = [(fll[0], "fl0")]
    f[OPT["h0ks"]] = [lambda: hcheck(0)]
    spread(f, w2q, 0, OPT["h0ks"])
    spread(f, [(l, "ps1") for l in psl[1]], OPT["ps1ks"], OPT["ps1ks"] + 1)
    h0 = [(l, f"h0_{aa}_{s_}") for aa in range(2) for s_, l in enumerate(hl[0][aa])]
    nh = min(22, 4 * (16 - OPT["h0ks"]))
    if nh > 0: spread(f, h0[:nh], OPT["h0ks"], 16)
    gemm1(1, f)
    stamp("g1b")
    epi1(1)
    if stop == 4: return finish_kernel()
    run(h0[max(nh, 0):])
    A2, R2, GB = 32, 64, 88
    a(f"ds_read_b128 {v(TM,4)}, v35 offset:2048", "gtab")
    for sg in range(3): a(f"s_xor_b32 s66, {sW}, {[3,1,2][sg]}\ns_mul_i32 s66, s66, 6144\ns_add_u32 s66, s66, {L_R2 + 2048*sg}\nv_add_u32 v{8+sg}, s66, v3")
    a(f"s_mul_i32 s66, {sW}, 6144\ns_add_u32 s66, s66, {L_R2}\nv_add_u32 v16, s66, v3")
    a(f"s_lshr_b32 s66, {sG}, 3\ns_and_b32 s67, {sG}, 1\ns_lshl1_add_u32 s66, s66, s67\ns_and_b32 s67, {sW}, 1\ns_lshl1_add_u32 s66, s66, s67\ns_bfe_u32 s67, {sG}, 0x20001\ns_lshl4_add_u32 s66, s66, s67\ns_lshl_b32 s66, s66, 12")
    a(f"s_lshr_b32 s67, {sW}, 1\ns_lshl1_add_u32 s67, {sJ}, s67\ns_lshl_b32 s67, s67, 6\ns_add_u32 s66, s66, s67")
    a("v_and_b32 v20, 12, v1\nv_lshlrev_b32 v20, 12, v20\nv_and_b32 v21, 3, v1\nv_lshl_add_u32 v20, v21, 10, v20\nv_and_b32 v21, 48, v1\nv_add3_u32 v20, v20, v21, s66\nv_add_u32 v21, s69, v20")
    a.nl("gtab")
    for i in range(4): a(f"v_lshlrev_b32 v{GB+2*i}, 16, v{TM+i}\nv_and_b32 v{GB+2*i+1}, 0xffff0000, v{TM+i}")
    h1 = [(l, f"h1_{aa}_{s_}") for aa in range(2) for s_, l in enumerate(hl[1][aa])]
    for hf in range(2):
        n = 0
        for sg in range(4):
            aa, b = sg >> 1, sg & 1
            for s_ in range(11):
                a.nv(f"w2_{s_}"); a.nv(f"h{hf}_{aa}_{s_}")
                if sg + s_ == 0: stamp(f"h{hf}arr")
                for e in range(2):
                    d = v(A2 + 8 * sg + 4 * e, 4)
                    a(f"v_mfma_f32_16x16x32_bf16 {d}, {W2fr(s_,b,e)}, {Hfr(hf,s_,aa)}, {0 if s_ == 0 else d}")
                    k = 2 * s_ + e; n += 1
                    if sg > 0 and k in (3, 4): a(f"ds_write_b128 v{8+sg-1}, {v(A2+8*(sg-1)+4*(k-3),4)} offset:{24576*hf + 1024*(k-3)}")
                    if sg == 3 and k == 8: a("s_waitcnt lgkmcnt(0)\ns_barrier")
                    if sg == 3 and 8 <= k < 14: a(f"ds_read_b128 {v(R2+4*(k-8),4)}, v16 offset:{24576*hf + 1024*(k-8)}", "r2")
                    if sg == 3 and k == 17: a.wl("r2")
                    if sg == 3 and k >= 17:
                        for i in ([0, 1], [2, 3], [4, 5], [6], [7])[k - 17]: a(f"v_add_f32 v{R2+i}, v{R2+i}, v{R2+8+i}\nv_add_f32 v{R2+i}, v{R2+i}, v{R2+16+i}")
                    if hf == 0 and n == OPT["f1n"]: hflag(1)
                    if hf == 0 and n == OPT["p1n"]: a(fll[1], "fl1")
                    if hf == 0 and n == OPT["h1n"]: hcheck(1)
                    if hf == 0 and n >= OPT["h1n"] and h1 and not (sg == 3 and k >= 17): a(*h1.pop(0))
        run(h1); h1 = []
        if hf == 0 and OPT["wb"]:
            a(f"s_or_b32 s66, {sI}, {sW}\ns_cbranch_scc0 L_wb\nbuffer_load_dword v122, v31, {WS}, s34 offen\nL_wbd:")
            tail2.append(("L_wb", "L_wbd", "buffer_wbl2"))
        stamp("g2a" if hf == 0 else "g2b")
        x = XR + 8 * hf
        for i in range(4): a(f"v_pk_fma_f32 {v(x+2*i,2)}, {v(R2+2*i,2)}, {v(GB+2*i,2)}, {v(x+2*i,2)}")
        for i in range(4): a(f"v_pk_fma_f32 {v(x+2*i,2)}, {v(A2+24+2*i,2)}, {v(GB+2*i,2)}, {v(x+2*i,2)}")
        for i in range(4): a(f"v_cvt_pk_bf16_f32 v{TM+i}, v{x+2*i}, v{x+2*i+1}")
        a(f"global_store_dwordx4 v{20+hf}, {v(TM,4)}, s[28:29] nt")
    return finish_kernel()

if __name__ == "__main__":
    stop = int(sys.argv[1]) if len(sys.argv) > 1 else 99
    stamps = int(sys.argv[2]) if len(sys.argv) > 2 else 0
    out = sys.argv[3] if len(sys.argv) > 3 else "k.s"
    probe = sys.argv[4] if len(sys.argv) > 4 else None
    open(out, "w").write(gen(stop, stamps, probe=probe))
```

```python
import sys
from asm2 import *

EPOCH = 0; STATS = 0x1000; FLAGS = 0x6000; MODF = 0x8000; MODP = 0x10000; HFL = 0xA000; FL1 = 0x30000; PS = 0x40000
W1T = 0x100000; W2T = 0x280000; U = 0x400000; H = 0x800000; XT = 0xE00000
H1 = H + 0x300000; H1A = 0xC00000; H1B = 0x600000; HS = 22528
import os
XS = int(os.environ.get('XS', 12288))
OOB = 0x9000000; DBG = 0x2000000; STAMP_OFF = 0x8000000
TROW = 528; TCH = 60 * TROW
L_U = 0; L_K = 65536; KCP = 4160; KCH = 2 * KCP
L_H = 82176; HPAR = 2304; HCH = 2 * HPAR
L_RED = 91392; RW = 10240
L_MOD = 132352; L_SI = L_MOD + 3072; L_R2 = 65536
LDS_BYTES = L_SI + 1024
sW, sR, sTAG, sLDT, sD, sSPIN = "s3", "s40", "s41", "s42", "s43", "s48"
WS = "s[32:35]"; WJ = "s[36:39]"
def k4(k): return "0" if k == 0 else f"s{48 + k}"
GEXP = list(range(9)) + [256, 258, 260, 262, 264, 512, 516, 520, 768, 772, 776, 1024, 1032, 1280, 1288, 1536, 1544, 1792, 1800]

import os
ONLY = set(os.environ.get("ST", "start,sync1,hgen,u0pub,u1pub,u0arr,g1a,u1arr,h0pub,g1b,h1pub,h0arr,g2a,h1arr,g2b,end").split(","))
OPT = dict(pp=-1, pl=0, oss=-1, s2e=1, pace3=2, rbf=0, rb=0, w2a=34, w2r=0, w2f=0, w1f=0, psb=0, w2u=0, spl=1, psa=0, w2s=0, ost=0, ro=1, ev0=14, ev1=10, wbs=50, hxt=1, st2=1, pace1b=4, nw2p=0, pacep=4, u0s=0, u0d=2, tlb=0, tsh=20, oob=0, nopf=0, xtt=100, pF=120, fls=4, far=0, hst=0, htp=1, ht=0, w2t=-1, w1t=3, mpp=134, mfp=80, w1s=40, w1e=143, loc=1, wb=1, wmpos=0, pI2=-1, touch=0, xtst=0,
           pW1=0, pB=50, pW2=200, sw=12, nw1c=24, nwp=6, pace=4, nf=2, u1s=0, h1t=0, ps0s=60, u1p=84, e0s=0, f0d=30, p0d=40, c0d=24, ps1s=64, f1n=8, p1n=28, h1n=44, pace2=2, ncp=99, gap=2, e0a=1, f0s=24, p0s=48, c0s=64, e1s=66, ps1p=40)
OPT.update(ev0=24, mfp=100, mpp=141, sw=8, w1s=20, w1t=2, pacep=2, nw1c=48, nwp=0, u1s=0, psa=1, ps1p=56, e1s=80, f0s=24, p0s=52, c0s=68, pace1b=3, st2=0, nw2p=10, pace=3, ps0s=45, u1p=56, f1n=16, p1n=34, h1n=44, ost=1)
for kv in os.environ.get("OPT", "").split(","):
    if kv: OPT[kv.split("=")[0]] = int(kv.split("=")[1])
def v(i, n=1): return f"v{i}" if n == 1 else f"v[{i}:{i+n-1}]"
def ar(i, n=1): return f"a{i}" if n == 1 else f"a[{i}:{i+n-1}]"

FLG = ('sc1', '', 'nt', 'sc1 nt', 'sc0', 'sc0 sc1')
def page_delta(pg, e):
    if pg == 0: return e
    if pg == 1: return [0, 0, 2, 4, 4, 4, 6, 8, 8][e]
    if pg < 4: return [0, 0, 0, 4, 4, 4, 8, 8, 8][e]
    return [0, 0, 0, 0, 0, 8, 8, 8, 8][e]
def gtable():
    t = []
    for wp in range(2):
        for rho in range(32):
            i, h, r = rho >> 3, (rho >> 2) & 1, rho & 3
            ri = 4 * i + r; pg0 = 4 * wp + 2 * h
            if ri < 8: ex = 256 * pg0 + page_delta(pg0, ri)
            elif ri == 9: ex = 256 * pg0 + 8
            else: ex = 256 * (pg0 + 1) + page_delta(pg0 + 1, ri - 8)
            t.append((32 + GEXP.index(ex)) * TROW)
    return t

def rr(a, streams):
    while any(streams):
        for s in streams:
            if s: a(s.pop(0))

def merge(streams):
    out = []; streams = [list(s) for s in streams]
    while any(streams):
        for s in streams:
            if s: out.append(s.pop(0))
    return out

def gen(stop=99, stamps=False, probe=None):
    a = Asm(); tail = []; tail2 = []; tail3 = []
    nst = [0]; names = []
    def stamp(name):
        if stamps and name in ONLY:
            i = nst[0]; nst[0] += 1; assert i < 16; names.append(name)
            a(f"{'s_memtime' if stamps == 2 else 's_memrealtime'} s[{70+2*i}:{71+2*i}] ; stamp {name}")
    def poll(loads, check, tag):
        lr, lb = a.label("L_retry"), a.label("L_back")
        a.wvm(tag)
        for c in check: a(c)
        a(f"s_cbranch_vccnz {lr}\n{lb}:")
        tail.append((lr, lb, loads, check, tag))
    def dstore(text, tag, pre="", post=""):
        lr, lb = a.label("L_far"), a.label("L_near")
        a(f"s_cmp_lg_u32 s63, 0\ns_cbranch_scc1 {lr}")
        a(text + (("", " nt", " sc0", " sc0 nt")[OPT['hst']] if tag.startswith("hst") else ""), tag); a(f"{lb}:")
        tail2.append((lr, lb, text))
    def finish_kernel():
        if stamps:
            a("s_waitcnt vmcnt(0) lgkmcnt(0)")
            stamp("end")
            a(f"s_waitcnt lgkmcnt(0)\ns_lshl_b32 s44, {sR}, 2\ns_add_u32 s44, s44, {sW}\ns_lshl_b32 s44, s44, 7\ns_add_u32 s44, s44, {STAMP_OFF}\nv_mov_b32 v1, 0\ns_mov_b64 exec, 1")
            for i in range(nst[0]): a(f"v_mov_b32 v2, s{70+2*i}\nbuffer_store_dword v2, v1, {WS}, s44 offen offset:{4*i}")
            a(f"v_mov_b32 v2, {sSPIN}\nbuffer_store_dword v2, v1, {WS}, s44 offen offset:124")
            for q in range(2): a(f"v_mov_b32 v2, s{59+q}\nbuffer_store_dword v2, v1, {WS}, s44 offen offset:{112+4*q}")
        if probe is not None:
            i = names.index(probe)
            a(f"s_add_u32 s44, s{70+2*i}, 4500\ns_mov_b32 s45, 20000\nL_probe:\ns_memrealtime s[46:47]\ns_waitcnt lgkmcnt(0)\ns_sub_u32 s45, s45, 1\ns_cbranch_scc1 L_end\ns_sub_u32 s46, s46, s44\ns_cmp_lt_i32 s46, 0\ns_cbranch_scc1 L_probe")
        if stamps: print("stamps:", names)
        a("L_end:\ns_endpgm")
        for q, (lr, lb, loads, check, tag) in enumerate(tail):
            a(f"{lr}:")
            if stamps: a(f"s_add_u32 s{59+(q>>2)}, s{59+(q>>2)}, {1 << 8*(q&3)}")
            a(f"s_cmp_eq_u32 {sSPIN}, 0\ns_cbranch_scc1 {lb}\ns_sub_u32 {sSPIN}, {sSPIN}, 1\ns_nop 1")
            for l in loads: a(l)
            a("s_waitcnt vmcnt(0)")
            for c in check: a(c)
            a(f"s_cbranch_vccnz {lr}\ns_branch {lb}")
        for lr, lb, text in tail2: a(f"{lr}:\n" + text.replace("\n", " sc1\n") + f" sc1\ns_nop 0\ns_branch {lb}")
        for text in tail3: a(text)
        a(".p2align 6\n.type L_tab,@object\nL_tab:")
        a(".short " + ", ".join(str(x) for x in gtable()))
        a("L_tabend:")
        k = kernel_text(KN + "_kernel", a.finish(), 512, 256)
        return file_text([k], [f"grid=(256,1,1) block=(256,1,1) lds={LDS_BYTES}"])
    def dump_lds(off, nbytes):
        a("s_waitcnt vmcnt(0) lgkmcnt(0)\ns_barrier")
        a(f"v_lshlrev_b32 v2, 4, v0\nv_add_u32 v3, {off}, v2\ns_lshl_b32 s44, {sR}, 18\ns_add_u32 s44, s44, {DBG}")
        for i in range((nbytes + 4095) // 4096):
            a(f"ds_read_b128 v[4:7], v3\nv_add_u32 v3, 4096, v3\ns_waitcnt lgkmcnt(0)\nbuffer_store_dwordx4 v[4:7], v2, {WS}, s44 offen\ns_add_u32 s44, s44, 4096\ns_waitcnt vmcnt(0)")

    def run(items):
        for it in items:
            if callable(it): it()
            elif isinstance(it, tuple): a(*it)
            else: a(it)
    def tagchk(regs, acc):
        return [f"v_xor_b32 v{acc}, {sTAG}, v{regs[0]}"] + [f"v_bitop3_b32 v{acc}, v{acc}, v{t}, {sTAG} bitop3:0xf6" for t in regs[1:]] + [f"v_cmp_ne_u32 vcc, 0, v{acc}"]
    def sent(regs, acc):
        L = []; r = list(regs)
        L.append(f"v_max3_u32 v{acc}, v{r[0]}, v{r[1]}, v{r[2]}"); r = r[3:]
        while len(r) >= 2: L.append(f"v_max3_u32 v{acc}, v{acc}, v{r[0]}, v{r[1]}"); r = r[2:]
        if r: L.append(f"v_max_u32 v{acc}, v{acc}, v{r[0]}")
        return L + [f"v_cmp_eq_u32 vcc, -1, v{acc}"]
    sX, sI = "s30", "s31"
    def htouch(r):
        if OPT['ht'] >= 2:
            a(f"s_mul_i32 s2, {sR}, 22016\ns_add_u32 s2, s2, {H}\nv_min_u32 v{r}, 171, v0\nv_lshlrev_b32 v{r}, 7, v{r}")
            a(f"buffer_load_dword v{r}, v{r}, {WS}, s2 offen" + ("", " nt", " sc1")[OPT['ht'] - 2], "ht")
    def touch(base, r):
        return [f"s_mul_i32 s64, {sI}, {344*128}\ns_add_u32 s64, s64, {base}\nv_lshlrev_b32 v{r}, 7, v0\nv_min_u32 v{r+1}, {87*128}, v{r}",
                (f"buffer_load_dword v{r}, v{r}, {WS}, s64 offen sc1\ns_add_u32 s64, s64, {k4(8)}\nbuffer_load_dword v{r+1}, v{r+1}, {WS}, s64 offen sc1", "tw")]
    stamp("start")
    a(f"s_lshr_b32 {sI}, s2, 3\ns_cmp_ge_u32 {sI}, 32\ns_cbranch_scc1 L_end")
    a("s_load_dwordx16 s[4:19], s[0:1], 0\ns_load_dwordx8 s[20:27], s[0:1], 64\ns_load_dwordx2 s[32:33], s[0:1], 112")
    a("s_getpc_b64 s[46:47]\nL_pc:")
    a(f"s_lshl_b32 s44, {sI}, 10\nv_lshl_add_u32 v2, v0, 2, s44\nv_min_u32 v2, L_tabend-L_pc-4, v2")
    a("global_load_dword v100, v2, s[46:47]", "cp")
    a(f"v_lshrrev_b32 v16, 6, v0\nv_and_b32 v1, 63, v0\ns_and_b32 {sX}, s2, 7\nv_readfirstlane_b32 {sW}, v16\nv_lshlrev_b32 v3, 4, v1")
    a(f"s_lshl_b32 s44, {sX}, 5\ns_add_u32 {sR}, s44, {sI}\ns_lshl_b32 s44, {sR}, 9\nv_lshl_add_u32 v46, v0, 1, s44")
    a(f"s_lshl_b32 s44, {sI}, 5\ns_add_u32 s44, s44, {sX}\ns_lshl_b32 s44, s44, 11\nv_lshl_add_u32 v47, v16, 14, v3\nv_add_u32 v47, s44, v47\ns_lshl_b32 s44, {sR}, 2")
    a("s_waitcnt lgkmcnt(0)")
    stamp("karg")
    a(f"s_load_dword {sLDT}, s[14:15], s44")
    for i in range(4): a(f"global_load_ushort v{12+i}, v46, s[{6+2*i}:{7+2*i}] nt", "kp")
    a("global_load_dwordx4 v[4:7], v47, s[4:5] nt\nglobal_load_dwordx4 v[8:11], v47, s[4:5] offset:1024 nt", "xr")
    a(f"s_load_dword {sTAG}, s[32:33], {EPOCH}\ns_load_dword {sD}, s[16:17], s44\ns_load_dwordx2 s[28:29], s[0:1], 96")
    a(f"s_mul_i32 s45, {sW}, {RW}\ns_add_u32 s45, s45, {L_RED}\ns_mov_b32 m0, s45")
    a(f"s_lshr_b32 s44, {sI}, 2\ns_mul_i32 s44, s44, {(1<<17)-(1<<14)}\ns_lshr_b32 s64, {sW}, 1\ns_mul_i32 s64, s64, {(1<<20)-(1<<12)}\ns_add_u32 s44, s44, s64")
    a(f"s_lshl1_add_u32 s64, {sI}, {sW}\ns_lshl4_add_u32 s64, s64, {sX}\ns_lshl_b32 s64, s64, 7\ns_add_u32 s44, s44, s64")
    a("v_lshrrev_b32 v17, 3, v1\nv_xor_b32 v120, v1, v17\nv_and_b32 v120, 7, v120\nv_lshl_add_u32 v120, v120, 4, s44\nv_lshl_add_u32 v120, v17, 14, v120")
    a("global_load_lds_dwordx4 v120, s[4:5] nt\nglobal_load_lds_dwordx4 v120, s[4:5] offset:1024 nt", "xt")
    def xtaddr():
        a(f"s_lshl2_add_u32 s64, {sX}, {sW}\ns_mul_i32 s64, s64, {8*XS}\ns_and_b32 s65, {sI}, 3\ns_bfe_u32 s44, {sI}, 0x10002\ns_lshl1_add_u32 s65, s65, s44\ns_and_b32 s44, {sI}, 24\ns_add_u32 s65, s65, s44\ns_lshl_b32 s65, s65, 7\ns_add_u32 s64, s64, s65\ns_add_u32 s64, s64, {XT}")
        a(f"v_and_b32 v16, 0x70, v3\nv_mul_u32_u24 v99, {XS}, v17\nv_add3_u32 v99, v99, v16, s64")
    if OPT["touch"]:
        xtaddr()
        a("v_min_u32 v16, 23, v1\nv_lshl_add_u32 v16, v16, 12, s64")
        a("global_load_dword v101, v16, s[32:33]" + ("", "", " nt")[OPT["touch"]], "xt")
    stamp("i_xt")
    a(f"s_mul_i32 s66, {sR}, 3\ns_add_u32 s66, s66, {sW}\ns_cmp_eq_u32 {sW}, 3\ns_cselect_b32 s66, 1000, s66\ns_mul_i32 s67, s66, 1525\ns_lshr_b32 s67, s67, 16")
    a(f"s_mul_i32 s64, s67, 85312\ns_lshl_b32 s65, s66, 6\ns_add_u32 s64, s64, s65\ns_add_u32 m0, s45, 2048")
    a("s_mov_b32 s36, s20\ns_mov_b32 s37, s21\ns_mov_b32 s38, 1409024\ns_mov_b32 s39, 0x20000")
    a("v_lshrrev_b32 v122, 2, v1\nv_and_b32 v121, 48, v3\ns_movk_i32 s65, 2752\nv_mad_u32_u24 v123, v122, s65, v121")
    a(f"buffer_load_dwordx4 v123, {WJ}, s64 offen nt lds\ns_add_u32 s64, s64, {16*2752-1024}\nbuffer_load_dwordx4 v123, {WJ}, s64 offen offset:1024 nt lds", "w1j")
    a(f"s_and_b32 s64, {sI}, 3\ns_lshl_b32 s65, s64, 8\nv_and_b32 v124, 127, v0\nv_lshl_add_u32 v125, v124, 1, s65")
    a("global_load_ushort v19, v125, s[24:25]", "c")
    stamp("i_w1")
    a(f"s_lshl2_add_u32 s64, s64, {sW}\ns_mul_i32 s64, s64, {32*6144}\ns_lshr_b32 s65, {sI}, 2\ns_lshl3_add_u32 s65, s65, {sX}\ns_lshl_b32 s65, s65, 7\ns_add_u32 s64, s64, s65")
    a(f"s_cmp_lt_u32 {sI}, 24\ns_cselect_b32 s64, s64, {OOB}\ns_mov_b32 s36, s26\ns_mov_b32 s37, s27\ns_mov_b32 s38, 3145728\ns_add_u32 m0, s45, 6144")
    a("v_and_b32 v123, 6, v17\nv_xor_b32 v123, v123, v1\nv_and_b32 v123, 7, v123\nv_lshlrev_b32 v123, 4, v123\ns_movk_i32 s65, 6144\nv_mad_u32_u24 v123, v17, s65, v123")
    a("s_mov_b32 s19, s64\ns_add_u32 s18, s45, 4096")
    def wm_issue():
        for it in range(4):
            a(f"buffer_load_dwordx4 v123, {WJ}, s19 offen offset:{1024*it} nt lds", "wm")
            if it < 3: a(f"s_add_u32 s19, s19, {49152-1024}")
        stamp("i_wm")
    if OPT["wmpos"] == 0: wm_issue()
    a("v_and_b32 v18, 31, v0\nv_and_b32 v16, 64, v0\nv_lshl_add_u32 v18, v18, 1, v16\nv_add_u32 v18, L_tab-L_pc, v18")
    a(f"s_lshr_b32 s68, s66, 4\ns_and_b32 s69, s66, 15\ns_lshl_b32 s64, s68, 15\ns_lshl_b32 s65, s69, 6\ns_add_u32 s2, s64, s65\nv_lshl_add_u32 v122, v122, 10, v121")
    def w2_issue():
        a("s_mov_b32 s0, m0\ns_mov_b32 m0, s18\ns_mov_b32 s36, s22\ns_mov_b32 s37, s23\ns_mov_b32 s38, 1409024")
        a(f"buffer_load_dwordx4 v122, {WJ}, s2 offen nt lds\ns_add_u32 s2, s2, {16384-1024}\nbuffer_load_dwordx4 v122, {WJ}, s2 offen offset:1024 nt lds", "w2j")
        a("global_load_ushort v18, v18, s[46:47]", "tab")
        a("s_mov_b32 m0, s0")
        if OPT['htp'] == 0: htouch(160)
        stamp("i_w2")
    a("s_mov_b32 s34, 0x9000000\ns_mov_b32 s35, 0x20000\nv_and_b32 v16, 0x70, v3")
    for k in range(1, 11): a(f"s_movk_i32 {k4(k)}, {4096*k}" if k < 8 else f"s_mov_b32 {k4(k)}, {4096*k}")
    a(f"s_mov_b32 {sSPIN}, 100000")
    if stamps: a("s_mov_b32 s59, 0\ns_mov_b32 s60, 0")
    a(f"s_mul_i32 s20, s67, {(1024 - 43*32768) & 0xffffffff}\ns_lshl_b32 s64, s66, 15\ns_add_u32 s20, s20, s64\ns_add_u32 s20, s20, {W1T}")
    a(f"s_lshr_b32 s64, s69, 1\ns_mul_i32 s64, s64, 43\ns_add_u32 s64, s64, s68\ns_and_b32 s65, s69, 1\ns_lshl1_add_u32 s64, s64, s65\ns_lshl_b32 s64, s64, 11\ns_add_u32 s21, s64, {W2T}")
    a(f"s_mul_i32 s27, s67, {-21984 & 0xffffffff}\ns_lshl_b32 s64, s66, 9\ns_add_u32 s27, s27, s64\ns_add_u32 s27, s27, {FL1}")
    a(f"s_cmp_lt_u32 s66, 688\ns_cselect_b32 s20, s20, {OOB}\ns_cselect_b32 s21, s21, {OOB}\ns_cselect_b32 s27, s27, {OOB}")
    a(f"s_getreg_b32 s63, hwreg(HW_REG_XCC_ID, 0, 4)\ns_xor_b32 s63, s63, {sX}")
    if OPT['far']: a(f"s_and_b32 s63, {sI}, {OPT['far']}")
    a(f"s_lshr_b32 s64, {sI}, 4\ns_and_b32 s65, {sX}, 1\ns_lshl1_add_u32 s64, s64, s65\ns_bfe_u32 s65, {sI}, 0x20002\ns_lshl2_add_u32 s64, s64, s65\ns_lshr_b32 s65, {sX}, 1\ns_lshl2_add_u32 s64, s64, s65")
    a(f"s_and_b32 s65, {sI}, 3\ns_lshl2_add_u32 s64, s64, s65\ns_lshl2_add_u32 s64, s64, {sW}\ns_lshl4_add_u32 s1, s64, {k4(1)}")
    for i in range(4): a(f"v_mov_b32 v{76+i}, 0")
    a(f"v_lshrrev_b32 v80, 4, v1\nv_and_b32 v81, 15, v1\nv_mul_u32_u24 v82, {HPAR}, v80\nv_lshl_add_u32 v82, v81, 4, v82\nv_add_u32 v82, {L_H}, v82")
    a(f"v_mul_u32_u24 v83, {KCP}, v80\nv_and_b32 v84, 1, v1\nv_lshl_add_u32 v83, v84, 4, v83\nv_add_u32 v83, {L_K + 4096}, v83")
    a("ds_write_b128 v82, v[76:79]\nds_write_b128 v83, v[76:79]")
    a("v_and_b32 v82, 16, v1\nv_and_b32 v83, 32, v1\nv_lshl_add_u32 v46, v81, 4, s45\nv_lshl_add_u32 v46, v82, 5, v46\nv_lshl_add_u32 v46, v83, 3, v46")
    a(f"v_bfe_u32 v47, v1, 3, 2\nv_xor_b32 v47, {sW}, v47\nv_lshlrev_b32 v47, 5, v47\nv_lshl_add_u32 v47, v83, 6, v47\nv_and_b32 v85, 28, v1\nv_lshl_add_u32 v47, v85, 5, v47\nv_and_b32 v85, 3, v1\nv_lshl_add_u32 v47, v85, 3, v47\nv_add_u32 v47, {L_RED + 6144}, v47")
    a(f"v_and_b32 v85, 7, v1\nv_lshrrev_b32 v86, 5, v1\nv_lshl_add_u32 v86, {sW}, 1, v86\nv_xor_b32 v86, v86, v85\nv_lshlrev_b32 v86, 4, v86\nv_lshl_add_u32 v86, v85, 7, v86\nv_and_b32 v85, 3, v17\nv_lshl_add_u32 v86, v85, 2, v86\nv_add_u32 v120, {L_RED}, v86")
    a(f"v_lshrrev_b32 v85, 1, v124\nv_xor_b32 v85, v85, v124\nv_bfe_u32 v85, v85, 2, 1\nv_mul_u32_u24 v85, 12, v85\nv_xor_b32 v124, v124, v85\nv_lshlrev_b32 v124, 1, v124\nv_add_u32 v124, {L_SI}, v124")
    if not OPT['touch']: xtaddr()
    a(f"v_lshl_add_u32 v126, v80, 1, v84\nv_lshlrev_b32 v126, 4, v126\nv_lshlrev_b32 v127, 4, v80\nv_add_u32 v127, {L_SI}, v127")
    a(f"s_mul_i32 s24, {sX}, 12288\ns_add_u32 s24, s24, {MODP}\ns_lshl2_add_u32 s64, {sI}, {sW}\ns_lshl_b32 s64, s64, 7\ns_add_u32 s25, s24, s64\ns_cmp_lt_u32 {sI}, 24\ns_cselect_b32 s25, s25, {OOB}\ns_lshl4_add_u32 s24, {sI}, s24")
    if OPT["wmpos"] == 1: wm_issue()
    def tlb():
        sh = OPT['tsh']
        a(f"s_cmp_eq_u32 {sW}, 3\ns_cselect_b32 s64, 0, {OOB if OPT['tlb'] & 2 else 0}\nv_min_u32 v160, {(0x1100000 >> sh) - 1}, v1\nv_lshlrev_b32 v160, {sh}, v160")
        a(f"buffer_load_dword v160, v160, {WS}, s64 offen offset:2048", "tlb")
    if OPT['tlb'] & 3: tlb()
    stamp("pre")
    a(f"s_waitcnt lgkmcnt(0)\ns_mul_i32 {sTAG}, {sTAG}, 0x9e3779b5\ns_add_u32 {sTAG}, {sTAG}, 0x7f4a7c15")
    a(f"s_lshl_b32 s44, {sLDT}, 16\ns_and_b32 s45, {sLDT}, 0xffff0000\ns_cmp_lt_u32 {sW}, 2\ns_cselect_b32 s44, s44, s45")
    a(f"s_lshl_b32 s64, {sD}, 16\ns_and_b32 s45, {sD}, 0xffff0000\ns_cmp_lt_u32 {sW}, 2\ns_cselect_b32 {sD}, s64, s45")
    a(f"v_mov_b32 v16, 0x3fb8aa3b\nv_mul_f32 v17, s44, v16\nv_mov_b32 v95, {sTAG}\nv_exp_f32 v17, v17")
    for r_ in (51, 55, 58, 59): a(f"v_mov_b32 v{r_}, {sTAG}")
    a(f"s_lshr_b32 s44, {sW}, 1\ns_mul_i32 s44, s44, {TCH}\ns_and_b32 s45, {sW}, 1\ns_lshl_b32 s64, s45, 8\ns_add_u32 m0, s44, s64")
    a("s_mov_b32 s64, 0x3f803f80\ns_mov_b32 s65, 0x3b000000")
    stamp("pre2")
    a.wvm("kp")
    stamp("kp")
    for i in range(4): a(f"v_lshlrev_b32 v{12+i}, 16, v{12+i}")
    a("v_mul_f32 v12, v16, v12\nv_exp_f32 v12, v12\nv_cvt_pk_bf16_f32 v17, v17, v12")
    a("v_and_b32 v12, 0xffff0000, v17\nv_lshlrev_b32 v17, 16, v17")
    a("v_mul_f32 v12, v12, v17\nv_mul_f32 v13, v13, v17\nv_add_f32 v17, v17, v17")
    a("v_mul_f32 v12, 0xbfb8aa3b, v12\nv_mul_f32 v13, 0.15915494, v13")
    Z1, Z8, Z16, Z256, G0 = 20, 22, 24, 26, 28
    a(f"v_mul_f32 v{G0}, v14, v17\nv_mul_f32 v{G0+1}, v15, -v17")
    st = []
    for i, (pc, z, cj) in enumerate((("1.0", Z1, 1), ("0x41000000", Z8, 0), ("0x41800000", Z16, 0), ("0x43800000", Z256, 1))):
        t = 104 + 2 * i
        st.append([f"v_mul_f32 v{t}, {pc}, v12", f"v_mul_f32 v{t+1}, {pc}, v13", f"v_exp_f32 v{t}, v{t}", f"v_fract_f32 v{t+1}, v{t+1}",
                   f"v_cos_f32 v{z}, v{t+1}", f"v_sin_f32 v{z+1}, v{t+1}", f"v_mul_f32 v{z}, v{z}, v{t}",
                   f"v_mul_f32 v{z+1}, v{z+1}, {'-' if cj else ''}v{t}"])
    run(merge(st))
    def cmul(d, x, m, t):
        return [f"v_pk_mul_f32 {v(t,2)}, {v(x,2)}, {v(m,2)} op_sel:[0,0] op_sel_hi:[0,1]",
                f"v_pk_fma_f32 {v(d,2)}, {v(x,2)}, {v(m,2)}, {v(t,2)} op_sel:[1,1,0] op_sel_hi:[1,0,1] neg_lo:[0,1,0]"]
    def put(x, t, row): return [f"v_cvt_pk_bf16_f32 v{t}, v{x}, v{x+1}", f"ds_write_addtid_b32 v{t} offset:{row*TROW}"]
    grow = lambda e: 32 + GEXP.index(e)
    sE = ["v_mov_b32 v112, 0x3f80", "ds_write_addtid_b32 v112 offset:0"] + put(Z16, 113, 2)
    src = Z16
    for f in range(4, 32, 2): sE += cmul(30, src, Z16, 104) + put(30, 112 + (f >> 1 & 1), f); src = 30
    sO = put(Z8, 114, 1); src = Z8
    for f in range(3, 32, 2): sO += cmul(32, src, Z16, 106) + put(32, 114 + (f >> 1 & 1), f); src = 32
    keep = {2: 34, 4: 36, 6: 38, 8: 40}
    sXx = []; src = G0
    for e in range(1, 9):
        d = keep.get(e, 42); sXx += cmul(d, src, Z1, 108) + put(d, 116 + (e & 1), grow(e)); src = d
    for k in range(1, 8): sXx += cmul(40, 40, Z256, 108) + put(40, 116 + (k & 1), grow(256 * k + 8))
    sY = put(G0, 118, grow(0)); src = G0
    for k in range(1, 8): sY += cmul(44, src, Z256, 110) + put(44, 118 + (k & 1), grow(256 * k)); src = 44
    sY += cmul(34, 34, Z256, 110) + put(34, 118, grow(258)) + cmul(38, 38, Z256, 110) + put(38, 119, grow(262))
    for k in range(1, 4): sY += cmul(36, 36, Z256, 110) + put(36, 118 + (k & 1 ^ 1), grow(256 * k + 4))
    CH = merge([sE, sO, sXx, sY])
    a.wvm("xr")
    stamp("xrows")
    if OPT["pI2"] < 0: w2_issue()
    for i in range(4):
        for (d, x, y) in ((88, 4 + i, None), (89, 4 + i, 4 + i), (90, 8 + i, None), (91, 8 + i, 8 + i)):
            a(f"v_dot2_f32_bf16 v{d}, v{x}, {'s64' if y is None else v(y)}, {0 if i == 0 else v(d)}")
    S = ["v_permlane32_swap_b32 v88, v90\nv_permlane32_swap_b32 v89, v91\nv_add_f32 v88, v88, v90\nv_add_f32 v89, v89, v91",
         "v_permlane16_swap_b32 v88, v89\nv_add_f32 v88, v88, v89"]
    S += [f"v_add_f32_dpp v88, v88, v88 row_ror:{sh} row_mask:0xf bank_mask:0xf" for sh in (8, 4, 2)]
    S += ["v_add_f32_dpp v88, v88, v88 row_ror:1 row_mask:0xf bank_mask:0xf\nv_mul_f32 v88, s65, v88\nv_mov_b32 v89, v88",
          "v_permlane16_swap_b32 v88, v89\nv_fma_f32 v89, -v88, v88, v89\nv_max_f32 v89, 0, v89\nv_mov_b32 v90, v88\n"
          "v_cvt_pk_bf16_f32 v89, v89, v89\nv_lshlrev_b32 v89, 16, v89\nv_add_f32 v89, 0x3727c5ac, v89\nv_permlane32_swap_b32 v88, v90\n"
          "v_cvt_pk_bf16_f32 v89, v89, v89\nv_lshlrev_b32 v89, 16, v89\nv_sqrt_f32 v89, v89\nv_cvt_pk_bf16_f32 v94, v88, v90\n"
          "v_cvt_pk_bf16_f32 v89, v89, v89\nv_lshlrev_b32 v89, 16, v89\nv_rcp_f32 v92, v89\nv_rcp_f32 v93, v89",
          "v_permlane32_swap_b32 v92, v93\ns_mov_b64 exec, 1"]
    for s_ in S:
        run(CH[:2]); CH = CH[2:]
        a(s_)
    a(f"buffer_store_dwordx4 v[92:95], v76, {WS}, s1 offen sc1", "st")
    a("s_mov_b64 exec, -1")
    stamp("stats")
    a.wvm("xt")
    a("s_barrier")
    so = lambda s_: 40 * (s_ >> 1) + 4 * (s_ & 1)
    for k in range(3):
        a(f"ds_read2st64_b32 {v(48+4*k,2)}, v120 offset0:{so(3*k)} offset1:{so(3*k+1)}", f"x{k}")
        if k < 2: a(f"ds_read_b32 v{50+4*k}, v120 offset:{256*so(3*k+2)}", f"x{k}")
    ins = {}
    XM = (' sc1', '', ' nt')[OPT['xtst']]
    def at(p, *items): ins.setdefault(min(p, len(CH)), []).extend(items)
    xst = "\n".join(f"buffer_store_dwordx4 {v(48+4*k,4)}, v99, {WS}, {k4(k)} offen" for k in range(3))
    at(8, lambda: a.nl("x2"), lambda: dstore(xst, "xst"), lambda: stamp("xtpub"))
    if OPT['xtt'] >= 0:
        at(OPT['xtt'], f"s_mul_i32 s66, {sR}, {XS}\ns_mul_i32 s67, {sW}, 3072\ns_add_u32 s66, s66, s67\ns_add_u32 s66, s66, {XT}\nv_lshl_add_u32 v14, v1, 7, s66",
           f"s_and_b32 s66, {sR}, 7\ns_lshl2_add_u32 s66, s66, {sW}\ns_mul_i32 s66, s66, 6\ns_sub_u32 s66, s66, 24\nv_min_u32 v160, 29, v1\nv_add_u32 v160, s66, v160\nv_min_u32 v160, 175, v160",
           f"s_lshr_b32 s66, {sR}, 3\ns_mul_i32 s66, s66, {HS}\ns_add_u32 s66, s66, {H1 if OPT['hxt'] else OOB}\nv_cmp_gt_u32 vcc, 24, v1\nv_lshl_add_u32 v160, v160, 7, s66\nv_cndmask_b32 v14, v160, v14, vcc",
           (f"buffer_load_dword v14, v14, {WS}, 0 offen sc1", "xtt"))
    at(OPT['pF'], lambda: a.nv("w1s"), "s_mov_b64 exec, 1", (f"buffer_store_dword v95, v76, {WS}, s27 offen sc1", "fl"), "s_mov_b64 exec, -1", lambda: stamp("flpub"))
    if OPT['rb'] & 1: at(OPT['pF'], "v_and_b32 v13, 7, v1\nv_and_b32 v12, 8, v1\nv_lshlrev_b32 v13, 7, v13\nv_lshl_add_u32 v13, v12, 11, v13\ns_sub_u32 s20, s20, 16384", (f"buffer_load_dword v13, v13, {WS}, s20 offen {FLG[OPT['rbf']]}", "rb1"))
    late = []
    def wjob(p, nm, off, sd, step):
        at(p, lambda: a.wvm(nm + "j"), *[(f"ds_read_b64_tr_b16 {v(60+4*e+2*h,2)}, v46 offset:{off + 1024*h + 8*e}", nm + "t") for e in range(2) for h in range(2)])
        (late.extend if nm == "w2" and OPT["pl"] & 2 else lambda x: at(p + 10, lambda: a.nl(nm + "t"), *x))([(f"buffer_store_dwordx4 v[60:63], v3, {WS}, {sd} offen sc1\ns_add_u32 {sd}, {sd}, {step}\nbuffer_store_dwordx4 v[64:67], v3, {WS}, {sd} offen sc1", nm + "s")])
    wjob(8 + OPT["pW1"], "w1", 2048, "s20", 16384)
    p = 20 + OPT["pW1"]
    at(p, lambda: a.wvm("c"), "v_lshlrev_b32 v19, 16, v19\nv_mul_f32 v88, 0xbfb8aa3b, v19\nv_exp_f32 v88, v88")
    at(p + 1, "v_add_f32 v88, 1.0, v88\nv_rcp_f32 v88, v88")
    at(p + 2, "v_mul_f32 v88, v88, v19\nv_cvt_pk_bf16_f32 v88, v88, v88", ("ds_write_b16 v124, v88", "si"))
    at(OPT["pB"], lambda: a.wvm("wm"), lambda: a.nl("si"), lambda: stamp("wm"), "s_barrier")
    for ks in range(4):
        at(OPT["pB"] + ks, (f"ds_read_b64_tr_b16 {v(128+4*ks,2)}, v47 offset:{RW*ks}\nds_read_b64_tr_b16 {v(130+4*ks,2)}, v47 offset:{RW*ks+1024}\nds_read_b128 {v(144+4*ks,4)}, v127 offset:{64*ks}", f"m{ks}"))
        at(OPT["pB"] + 12 + 3 * ks, lambda ks=ks: a.nl(f"m{ks}"), f"v_mfma_f32_16x16x32_bf16 v[68:71], {v(128+4*ks,4)}, {v(144+4*ks,4)}, {0 if ks == 0 else 'v[68:71]'}")
    at(OPT["pB"] + 29, "s_mov_b32 vcc_lo, 0xaaaaaaaa\ns_mov_b32 vcc_hi, 0xaaaaaaaa\nv_cndmask_b32 v56, v68, v70, vcc\nv_cndmask_b32 v57, v69, v71, vcc\ns_mov_b32 exec_lo, 0x00030003\ns_mov_b32 exec_hi, 0x00030003",
       (f"buffer_store_dwordx4 v[56:59], v126, {WS}, s25 offen sc1", "mst"), "s_mov_b64 exec, -1", lambda: stamp("modpub"))
    if OPT["pI2"] >= 0: at(OPT["pI2"], w2_issue)
    wjob(OPT["pW2"], "w2", 4096, "s21", 1024)
    pf = [f"v_lshrrev_b32 v2, 3, v0\nv_lshlrev_b32 v2, 16, v2\nv_and_b32 v4, 0x70, v3\ns_lshl_b32 s66, {sR}, 7\ns_add_u32 s66, s66, {U}\nv_add3_u32 v2, v2, v4, s66",
          "v_mov_b32 v120, -1\nv_mov_b32 v121, -1\nv_mov_b32 v122, -1\nv_mov_b32 v123, -1",
          (f"buffer_store_dwordx4 v[120:123], v2, {WS}, 0 offen sc1\nbuffer_store_dwordx4 v[120:123], v2, {WS}, {k4(8)} offen sc1", "pf"),
          f"s_lshr_b32 s66, {sR}, 3\ns_lshl_b32 s66, s66, 12\ns_lshr_b32 s67, {sW}, 1\ns_lshl1_add_u32 s23, {sR}, s67\ns_lshl_b32 s23, s23, 8\ns_add_u32 s23, s23, s66\ns_lshl3_add_u32 s23, s45, s23\ns_add_u32 s23, s23, {PS}\n"
          "v_and_b32 v4, 0xf0, v3\nv_and_b32 v5, 16, v1\nv_lshl_add_u32 v4, v5, 8, v4",
          (f"s_mov_b32 exec_hi, 0\nbuffer_store_dwordx2 v[120:121], v4, {WS}, s23 offen sc1\ns_mov_b32 exec_hi, -1", "pf")]
    if OPT["pp"] >= 0:
        for i, x in enumerate(pf): at(OPT["pp"] + i, x)
        pf = []
    for i in range(len(CH) + 1):
        run(ins.get(i, []))
        if i < len(CH): a(CH[i])
    stamp("chend")
    a.nv("tab")
    a(f"v_and_b32 v21, 31, v1\nv_mul_u32_u24 v21, {TROW}, v21\nv_lshrrev_b32 v22, 5, v1\nv_lshl_add_u32 v22, v22, 4, s44\nv_add_u32 v21, v21, v22\nv_add_u32 v20, v18, v22")
    a(f"s_lshl_b32 s26, {sR}, 5\ns_add_u32 s26, s26, {FLAGS}\ns_cmp_eq_u32 {sW}, 3\ns_cselect_b32 s26, s26, {OOB}")
    if "a_st" in ONLY:
        a.nv("st"); stamp("a_st"); a.nv("xst"); stamp("a_xt"); a.nv("w1s"); stamp("a_w1")
    a("s_waitcnt lgkmcnt(0)\ns_barrier")
    KA, KB, KD = 128, 192, 104
    def rdk(s_): a(f"ds_read_b128 {v(KA+4*s_,4)}, v20 offset:{32*s_}\nds_read_b128 {v(KB+4*s_,4)}, v21 offset:{32*s_}", f"k{s_}")
    rdk(0)
    stamp("chains")
    for s_ in range(1, 6): rdk(s_)
    a(f"v_and_b32 v22, 31, v1\nv_lshrrev_b32 v23, 5, v1\nv_lshl_add_u32 v22, v23, 6, v22\nv_lshlrev_b32 v22, 4, v22")
    a(f"s_lshr_b32 s44, {sW}, 1\ns_mul_i32 s44, s44, {KCH}\ns_lshl_b32 s46, s45, 11\ns_sub_u32 s46, s44, s46\ns_add_u32 s46, s46, {L_K + 255*16 - 512}\nv_sub_u32 v22, s46, v22")
    a(f"s_cmp_eq_u32 s45, 0\ns_cselect_b32 s46, 0, 0xaaaaaaaa\ns_cselect_b32 s64, 1, 0\ns_mov_b32 s47, s46\ns_mov_b32 s65, 0")
    a(f"v_mov_b32 v24, {sD}\nv_cndmask_b32 v23, 0, v24, s[64:65]\ns_add_u32 s66, s44, {L_K + KCP + 4096}\nv_mov_b32 v24, s66")
    SW, XG, MP, FL = 72, 88, 100, 103
    sweep = [f"buffer_load_dwordx4 {v(XG+4*k,4)}, v17, {WS}, {k4(k)} offen sc1" for k in range(3)]
    sweep += [f"buffer_load_dwordx4 {v(SW+4*k,4)}, v25, {WS}, {k4(1+k)} offen sc1" for k in range(4)]
    sweep += [f"buffer_load_dwordx3 {v(MP,3)}, v16, {WS}, s24 offen sc1", f"buffer_load_dword v{FL}, v26, {WS}, {k4(6)} offen sc1"]
    fll1 = [f"buffer_load_dword v126, v124, {WS}, s69 offen sc1"]
    sweep.pop()
    if OPT['w1t'] != 1: sweep += fll1
    kf = [f"s_and_b32 s68, {sR}, 7\ns_mul_i32 s68, s68, 11\ns_min_u32 s68, s68, 76\ns_mul_i32 s69, {sW}, 3\ns_add_u32 s68, s68, s69\ns_lshr_b32 s69, s68, 1\ns_min_u32 s69, s69, 41\ns_lshl_b32 s69, s69, 9\ns_add_u32 s69, s69, {FL1}\nv_and_b32 v125, 31, v1\nv_lshlrev_b32 v124, 5, v125",
          f"s_mul_i32 s66, {sR}, {XS}\ns_add_u32 s66, s66, {XT}\ns_cmp_eq_u32 s63, 0\ns_cselect_b32 s66, s66, {STATS}\nv_lshlrev_b32 v25, 4, v0\nv_add_u32 v17, s66, v25\nv_lshlrev_b32 v26, 5, v0",
          "v_min_u32 v16, 23, v1\nv_lshlrev_b32 v16, 9, v16\nv_lshrrev_b32 v36, 2, v1\nv_cmp_eq_u32 vcc, 4, v36",
          "v_mov_b32 v37, 0x2b800000\nv_cndmask_b32 v37, 0, v37, vcc\nv_cmp_eq_u32 s[66:67], 1, v36\ns_or_b64 vcc, vcc, s[66:67]",
          "v_cndmask_b32 v36, 0, 1.0, vcc",
          f"v_lshrrev_b32 v28, 5, v1\nv_mul_u32_u24 v19, {HPAR}, v28\nv_and_b32 v27, 15, v1\nv_lshl_add_u32 v19, v27, 4, v19",
          f"v_bfe_u32 v29, v1, 4, 1\nv_lshl_add_u32 v19, v29, 3, v19\ns_lshl_b32 s66, {sW}, 8\ns_add_u32 s66, s66, {L_H + 15*16}\nv_add_u32 v19, s66, v19",
          f"v_add_u32 v27, v27, v28\nv_lshlrev_b32 v27, 4, v27\nv_mul_u32_u24 v29, {HPAR}, v29",
          f"s_lshr_b32 s66, {sW}, 1\ns_mul_i32 s66, s66, {HCH}\ns_lshl_b32 s67, s45, 7\ns_sub_u32 s66, s66, s67\ns_add_u32 s66, s66, {L_H + 14*16 - 96}\nv_add3_u32 v27, v27, v29, s66"]
    if OPT['nopf']: pf.pop(2)
    if OPT["pl"] & 1: late += [pf.pop(4), pf.pop(2)]
    ltag = late[-1][1] if late else None
    kf = kf[:3] + pf + kf[3:]
    assert len(kf) <= 16
    sq = list(sweep)
    for s_ in range(16):
        a.wl(f"k{s_}")
        a(f"v_mfma_f32_32x32x16_bf16 {v(KD,16)}, {v(KA+4*s_,4)}, {v(KB+4*s_,4)}, {0 if s_ == 0 else v(KD,16)}")
        if s_ + 6 < 16: rdk(s_ + 6)
        if kf: run([kf.pop(0)])
        if s_ == OPT['fls'] and OPT['w1t'] == 1: a(fll1[0], "fl1")
        if late and not sq and not OPT["pl"] & 4: run([late.pop(0)])
        if s_ >= OPT["sw"]:
            for l in sq[:2]: a(l, "sw")
            sq = sq[2:]
    stamp("kmf")
    a("v_and_b32 v20, 15, v1\nv_add_u32 v21, 1, v20\nv_lshrrev_b32 v21, 1, v21\nv_lshrrev_b32 v28, 4, v1\nv_lshlrev_b32 v28, 2, v28\nv_sub_u32 v21, v28, v21\nv_lshlrev_b32 v21, 2, v21")
    a(f"v_and_b32 v20, 1, v20\nv_mul_u32_u24 v20, {KCP}, v20\nv_sub_u32 v21, v21, v20")
    a(f"s_lshl_b32 s66, s45, 8\ns_sub_u32 s66, s44, s66\ns_add_u32 s66, s66, {L_K + KCP + 4*(1016 - 48 - 128)}\nv_add_u32 v20, s66, v21\nv_add_u32 v21, -1024, v20")
    if OPT["sw"] < 20:
        for l in sq: a(l, "sw")
        sq = []
    P0, P1 = KD, KD + 8
    a(f"v_add_f32 v{P0}, v{P0}, v23\nv_cndmask_b32 v{P0+4}, v{P0+4}, v{P0+5}, s[46:47]\nv_cndmask_b32 v{P1+4}, v{P1+4}, v{P1+5}, s[46:47]")
    t0 = [P0 + e for e in range(8)] + [P1 + 1]
    t1 = [P1, P1] + [P1 + e for e in range(2, 8)] + [P1 + 7]
    for i, (t, sh, off) in enumerate(((t0, 0, 512), (t0, 1, 512 + KCP), (t1, 0, 0), (t1, 1, KCP))):
        d = 40 + 4 * i
        for q in range(4): a(f"v_cvt_pk_bf16_f32 v{d+q}, v{t[7-2*q+sh]}, v{t[6-2*q+sh]}")
        a(f"ds_write_b128 v22, {v(d,4)} offset:{off}")
    a(f"v_cvt_pk_bf16_f32 v23, v{P0}, 0\ns_mov_b64 exec, s[64:65]\nds_write_b32 v24, v23\ns_mov_b64 exec, -1")
    for l in sq: a(l, "sw")
    a("s_waitcnt lgkmcnt(0)")
    for i in range(2, 4): a(f"v_add_u32 v{20+i}, {-1024*i}, v20")
    a("s_barrier")
    stamp("kgen")
    if stop == 1:
        dump_lds(L_K, 2 * KCH); return finish_kernel()
    def Afr(rho, aa, n=4, o=0): return ar(16 * rho + 4 * aa + o, n) if aa < 4 else v(192 + 32 * (rho & 1) + 4 * (aa - 4) + o, n)
    def Bfr(rho, b): return v(128 + 16 * rho + 4 * b, 4) if b < 4 else v(208 + 32 * (rho & 1) + 4 * (b - 4), 4)
    def rdA(rho, aa):
        o = 16 * (3 - rho) + 128 * (1 - (aa & 1))
        return [(f"ds_read2_b32 {Afr(rho,aa,2,2*h)}, v{20+(aa>>1)} offset0:{o+2*h} offset1:{o+2*h+1}", f"A{rho}_{aa}") for h in range(2)]
    def rdB(rho, b): return (f"ds_read_b128 {Bfr(rho,b)}, v27 offset:{256*b + 32*(3-rho)}", f"B{rho}_{b}")
    for rho in range(4):
        for aa in range(4): run(rdA(rho, aa))
    stamp("afr")
    run(late)
    a(f"v_lshrrev_b32 v127, 5, v1\nv_add_u32 v127, s68, v127\nv_min_u32 v127, 85, v127\nv_lshlrev_b32 v125, 7, v125\nv_lshl_add_u32 v127, v127, 14, v125")
    a(f"s_lshr_b32 s66, {sI}, 3\ns_lshl_b32 s66, s66, 12\ns_add_u32 s66, s66, {W1T}\ns_add_u32 s67, s68, 2\ns_min_u32 s67, s67, 85\ns_lshl_b32 s67, s67, 14\ns_add_u32 s67, s67, s66")
    if OPT['w1t'] == 1: poll(fll1, [f"v_cmp_ne_u32 vcc, {sTAG}, v126"], "fl1")
    stamp("flarr")
    if OPT['h1t'] >= 4: a(f"s_mul_i32 s38, {sR}, {XS}\ns_mul_i32 s39, {sW}, 3072\ns_add_u32 s38, s38, s39\ns_add_u32 s38, s38, {H1}\nv_min_u32 v18, 23, v1\nv_lshlrev_b32 v18, 7, v18")
    h1touch = (f"buffer_load_dword v18, v18, {WS}, s38 offen", "ht")
    if OPT['rb'] & 2: a("v_and_b32 v18, 15, v1\nv_lshlrev_b32 v18, 7, v18\ns_sub_u32 s21, s21, 1024")
    def w1touch():
        if OPT['rb'] & 2: a(f"buffer_load_dword v18, v18, {WS}, s21 offen {FLG[OPT['rbf']]}", "ht")
        if OPT['rb'] & 4: a(f"buffer_load_dword v38, v2, {WS}, 0 offen {FLG[OPT['rbf']]}\nbuffer_load_dword v39, v2, {WS}, {k4(8)} offen {FLG[OPT['rbf']]}", "ht")
        if OPT['h1t'] == 4: a(*h1touch)
        a(f"buffer_load_dword v127, v127, {WS}, s66 offen sc1\nbuffer_load_dword v125, v125, {WS}, s67 offen sc1", "tw")
        if OPT['h1t'] == 5: a(*h1touch)
    if OPT['h1t'] == 6: a(*h1touch)
    if OPT['w1t'] == 1: w1touch()
    poll(sweep, tagchk([XG + 3, XG + 7, XG + 11, SW + 3, SW + 7, SW + 11, SW + 15, MP + 2] + ([126] if OPT['w1t'] != 1 else []), 29), "sw")
    stamp("sync1")
    if OPT['w1t'] == 4: a("s_barrier")
    if OPT['w1t'] in (2, 4): w1touch()
    a("s_cmp_lg_u32 s63, 0\ns_cbranch_scc1 L_gather\nL_gathered:")
    tail3.append(f"L_gather:\nv_and_b32 v28, 15, v0\nv_lshlrev_b32 v28, 14, v28\nv_and_b32 v29, 48, v0\nv_lshl_add_u32 v28, v29, 8, v28\ns_lshl_b32 s0, {sW}, 18\ns_lshl2_add_u32 s0, {sR}, s0\nv_add_u32 v28, s0, v28\nv_add_u32 v29, 0x100000, v28\n"
                 + "".join(f"global_load_dword v{XG+s_+s_//3}, v{28+(s_>>2)}, s[4:5] offset:{1024*(s_&3)}\n" for s_ in range(8)) + "s_waitcnt vmcnt(0)\ns_branch L_gathered")
    XF, HT = 56, 104
    M = [f"v_add_f32_dpp v{MP+e}, v{MP+e}, v{MP+e} quad_perm:{q} row_mask:0xf bank_mask:0xf" for q in ("[1,0,3,2]", "[2,3,0,1]") for e in range(2)]
    M += [f"v_cvt_pk_bf16_f32 v{MP+1}, v{MP}, v{MP+1}", f"v_lshlrev_b32 v{MP}, 16, v{MP+1}", f"v_and_b32 v{MP+1}, 0xffff0000, v{MP+1}"]
    M += [f"v_add_f32 v{MP+e}, v{MP+e}, v{c}" for c in (36, 37) for e in range(2)] + [f"v_cvt_pk_bf16_f32 v{MP}, v{MP}, v{MP+1}"]
    xs = [XG + s_ + s_ // 3 for s_ in range(8)]
    X = [f"v_lshlrev_b32 v{XF+2*j}, 16, v{xs[j]}\nv_and_b32 v{XF+2*j+1}, 0xffff0000, v{xs[j]}" for j in range(8)]
    X += [f"v_lshlrev_b32 v{40+2*i}, 16, v{SW+4*i+2}\nv_and_b32 v{41+2*i}, 0xffff0000, v{SW+4*i+2}" for i in range(4)]
    run(merge([M, X]))
    M = [f"v_readlane_b32 s{12+m}, v{MP}, {4*m}" for m in (0, 1, 2, 4, 3, 5)]
    X = [f"v_pk_add_f32 {v(HT+2*j,2)}, {v(XF+2*j,2)}, {v(40+2*(j>>1),2)} op_sel:[0,{j&1}] op_sel_hi:[1,{j&1}] neg_lo:[0,1] neg_hi:[0,1]" for j in range(8)]
    run(merge([M, X]))
    a("s_lshl_b32 s4, s13, 16\ns_and_b32 s5, s13, 0xffff0000\ns_lshl_b32 s6, s16, 16\ns_and_b32 s7, s16, 0xffff0000\ns_lshl_b32 s8, s12, 16\ns_and_b32 s9, s12, 0xffff0000\ns_lshl_b32 s10, s14, 16\ns_and_b32 s11, s14, 0xffff0000")
    a("v_mov_b32 v34, s8\nv_mov_b32 v35, s9")
    for j in range(8): a(f"v_pk_mul_f32 {v(HT+2*j,2)}, {v(HT+2*j,2)}, {v(SW+4*(j>>1),2)} op_sel:[0,{j&1}] op_sel_hi:[1,{j&1}]")
    for hf in range(2):
        for j in range(4 * hf, 4 * hf + 4): a(f"v_pk_fma_f32 {v(HT+2*j,2)}, {v(HT+2*j,2)}, s[4:5], v[34:35]")
        for c in range(2):
            for q in range(2): a(f"v_cvt_pk_bf16_f32 v{40+4*hf+2*c+q}, v{HT+8*hf+4*q+c}, v{HT+8*hf+4*q+2+c}")
            a(f"ds_write_b64 v19, {v(40+4*hf+2*c,2)} offset:{HCH*c + 1024*hf}")
    a(f"v_mov_b32 v28, s16\nv_mov_b32 v29, s15\nv_mov_b32 v30, s17\ns_xor_b32 s0, s63, {sX}\ns_xor_b32 s0, s0, {sTAG}\nv_mov_b32 v31, s0\nv_mov_b32 v15, {sTAG}\nv_mov_b32 v6, 0\ns_add_u32 s26, s26, {MODF - FLAGS}")
    if ltag: a.nv(ltag)
    a("s_waitcnt lgkmcnt(0)\ns_barrier")
    for b in range(4): a(*rdB(0, b))
    a("s_mov_b64 exec, 1")
    a(f"buffer_store_dwordx4 v[28:31], v6, {WS}, s26 offen sc1", "mf")
    a("s_mov_b64 exec, -1")
    if OPT['w1t'] == 3: w1touch()
    stamp("hgen")
    if stop == 2:
        dump_lds(L_H, 2 * HCH); return finish_kernel()
    ACC = 72; Y = 104
    for b in range(4): a(*rdB(1, b))
    sG, sJ, sH = "s44", "s45", "s27"
    a(f"s_lshr_b32 {sG}, {sR}, 3\ns_and_b32 {sJ}, {sR}, 7\ns_mul_i32 s46, {sJ}, 11\ns_cmp_eq_u32 {sJ}, 7\ns_cselect_b32 s46, 76, s46\ns_cmp_lt_u32 {sJ}, 6\ns_cselect_b32 s47, 11, 10\ns_add_u32 s47, s47, s46")
    a(f"s_sub_u32 s64, s46, s47\ns_lshl_b32 s64, s64, 10\ns_add_u32 s64, s64, {XS}\ns_bitcmp1_b32 {sR}, 0\ns_cselect_b32 s64, 0, s64\ns_mul_i32 {sH}, {sR}, {XS}\ns_add_u32 {sH}, {sH}, s64")
    a(f"s_mul_i32 s64, {sW}, 3\ns_add_u32 s46, s46, s64\ns_lshl_b32 s64, s64, 10\ns_add_u32 {sH}, {sH}, s64")
    def W1fr(ks, t): return ar(64 + 12 * ks + 4 * t, 4)
    w1loads = [(f"buffer_load_dwordx4 {W1fr(ks,t)}, v{8+t}, {WS}, {k4(ks>>2)} offen offset:{1024*(ks&3)} {FLG[OPT['w1f']]}", f"w1_{ks}") for ks in range(16) for t in range(3)]
    for t in range(3): a(f"s_add_u32 s65, s46, {t}\ns_lshl_b32 s66, s65, 14\ns_add_u32 s66, s66, {W1T}\ns_cmp_lt_u32 s65, s47\ns_cselect_b32 s66, s66, {OOB}\nv_add_u32 v{8+t}, s66, v3")
    if OPT['oob'] & 1: a("v_mov_b32 v8, s34\nv_mov_b32 v9, s34\nv_mov_b32 v10, s34")
    mf = []
    def order(pairs):
        by = {}
        for p in pairs: by.setdefault(p[0] + p[1], []).append(p)
        out = []; last = None
        while any(by.values()):
            k = max((k for k in by if by[k] and (k != last or sum(1 for q in by if by[q]) == 1)), key=lambda k: len(by[k]))
            out.append(by[k].pop(0)); last = k
        return out
    seen = set()
    for stg in range(2):
        for rho in range(4):
            if stg == 0: o = order([(aa, b) for b in range(4) for aa in range(4 - b)])
            else:
                o = order([(aa, b) for aa in range(4) for b in range(4) if aa + b >= 4]) + order([(aa, b) for b in range(8) for aa in range(8 - b) if max(aa, b) >= 4])
                if rho == 3:
                    by = {k: [p for p in o if p[0] + p[1] == k] for k in range(4, 8)}
                    o = [by[k].pop(0) for k in [5, 4] * 5 + [7, 5] + [6, 7] * 7]
            for aa, b in o:
                nt = aa + b; d = v(ACC + 4 * nt, 4)
                mf.append((f"v_mfma_f32_16x16x32_bf16 {d}, {Afr(rho,aa)}, {Bfr(rho,b)}, {d if nt in seen else 0}", [f"A{rho}_{aa}", f"B{rho}_{b}"], nt)); seen.add(nt)
    fl = {}
    def fat(p, *items): fl.setdefault(p, []).extend(items)
    def stream(rho): return [x for e in range(4, 8) for x in rdA(rho, e) + [rdB(rho, e)]]
    for i, x in enumerate([rdB(r_, b) for r_ in (2, 3) for b in range(4)] + stream(0) + stream(1)): fat(i, x)
    for r_, p in ((2, 66), (3, 92)):
        for i, x in enumerate(stream(r_)): fat(p + i, x)
    V = [f"s_add_u32 s65, s46, {t}\ns_add_u32 s67, {sH}, {1024*t}\ns_cmp_lt_u32 s65, s47\ns_cselect_b32 s67, s67, {OOB}\nv_add_u32 v{12+t}, s67, v3" for t in range(3)]
    nV = len(V)
    V += [f"s_lshl_b32 s66, {sW}, 12\ns_add_u32 s66, s66, {L_RED}\nv_add_u32 v24, s66, v3", f"s_lshl_b32 s66, {sW}, 10\ns_add_u32 s66, s66, {L_RED}\nv_add_u32 v25, s66, v3"]
    V += ["v_mov_b32 v32, s10", "v_mov_b32 v33, s11", "v_mul_f32 v32, s6, v32", "v_mul_f32 v33, s7, v33"]
    V += [f"v_mul_f32 v{XF+i}, s{6+(i&1)}, v{XF+i}" for i in range(16)]
    for i, x in enumerate(V): fat(i, x)
    assert len(V) <= 40
    fat(0, f"s_or_b32 s69, {sR}, {sW}\ns_cmp_eq_u32 s69, 0\ns_cselect_b32 s69, 0, {OOB}", (f"buffer_store_dword v15, v6, {WS}, s69 offen sc1", "ep"))
    NW = OPT["nw1c"]
    for i in range(NW): fat(OPT['w1s'] + (i * (OPT['w1e'] - OPT['w1s'])) // NW, w1loads[i])
    def lastuse(nt): return max(i for i, m in enumerate(mf) if m[2] == nt)
    for nt in range(8): fat(min(lastuse(nt) + 4, 144), (f"ds_write_b128 v24, {v(ACC+4*nt,4)} offset:{16384*(nt>>2) + 1024*(nt&3)}", f"rw{nt>>2}"))
    def fin(hf):
        L = [[(f"ds_read_b128 {v(Y+4*s_,4)}, v25 offset:{16384*hf + 4096*s_}", f"y{hf}_{s_}") for s_ in range(4)]]
        F = []
        for c in range(2):
            for kh in range(2):
                F.append(lambda c=c, kh=kh: a.nl(f"y{hf}_{2*c+kh}"))
                F += [f"v_fma_f32 v{XF+8*hf+2*r_+c}, v{Y+8*c+4*kh+r_}, v{32+c}, v{XF+8*hf+2*r_+c}" for r_ in range(4)]
            F += [f"v_cvt_pk_bf16_f32 v{40+2*c+q}, v{XF+8*hf+4*q+c}, v{XF+8*hf+4*q+2+c}" for q in range(2)]
        F += [(f"buffer_store_dwordx4 v[40:43], v2, {WS}, {k4(8*hf)} offen sc1", f"ust{hf}"), lambda: stamp(f"u{hf}pub")]
        return L[0], F
    rd, F = fin(0)
    fat(46, lambda: a.nl("rw0"), "s_barrier", *rd)
    p = 50; n = 0
    for x in F:
        fat(p, x)
        if not callable(x):
            n += 1
            if n % 2 == 0: p += 1
    mfl = [f"buffer_load_dwordx4 v[52:55], v26, {WS}, {k4(8)} offen sc1"]
    fat(OPT.get("mfp", 80), (mfl[0], "mfl"))
    fat(min(104, OPT['mpp'] - 1), f"v_lshlrev_b32 v19, 2, v0\nv_add_u32 v19, {L_MOD}, v19\ns_mov_b32 s69, {1<<20}")
    fat(OPT['mpp'], lambda: poll(mfl, [f"v_xor_b32 v7, {sTAG}, v55", "v_cmp_lt_u32 vcc, 15, v7"], "mfl"), "ds_write2st64_b32 v19, v52, v53 offset0:0 offset1:4\nds_write2st64_b32 v19, v54, v55 offset0:8 offset1:12")
    if OPT['w2t'] >= 0: fat(OPT['mpp'] + OPT['w2t'], *touch(W2T, 124))
    V = [f"s_lshl_b32 s66, {sG}, 16\ns_add_u32 s66, s66, {U}\nv_lshl_add_u32 v16, v0, 4, s66", "v_and_b32 v4, 32, v1", "v_lshlrev_b32 v18, 4, v0", "v_lshlrev_b32 v5, 1, v4", "v_xor_b32 v18, v18, v5",
         "v_and_b32 v5, 16, v1", "v_mul_u32_u24 v28, 36, v5", "v_and_b32 v7, 8, v1", "v_lshl_add_u32 v28, v7, 4, v28", "v_and_b32 v7, 48, v3", "v_add_u32 v28, v28, v7", "v_and_b32 v7, 4, v1", "v_lshl_add_u32 v28, v7, 1, v28",
         f"s_lshr_b32 s66, {sW}, 1\ns_lshl1_add_u32 s66, {sJ}, s66\ns_lshl_b32 s67, s66, 11\nv_lshl_add_u32 v30, v4, 5, v28", f"s_and_b32 s68, {sW}, 1\ns_lshl_b32 s68, s68, 6\ns_or_b32 s67, s67, s68\nv_xor_b32 v30, s67, v30",
         "v_lshl_add_u32 v28, v4, 3, v28", "v_xor_b32 v29, 64, v28",
         "v_lshrrev_b32 v4, 2, v4", "v_and_b32 v7, 1, v1", "v_lshl_add_u32 v34, v7, 10, v4", f"v_add_u32 v5, {L_MOD}, v5", "v_add_u32 v34, v34, v5",
         f"s_lshl_b32 s66, s66, 6\ns_add_u32 s66, s66, {L_MOD}\nv_and_b32 v35, 48, v1", "v_add_u32 v35, s66, v35"]
    V += [f"s_lshl_b32 s66, {sG}, 5\ns_add_u32 s66, s66, {L_MOD + 3072}\nv_and_b32 v31, 7, v1", "v_lshlrev_b32 v31, 2, v31", "v_add_u32 v11, s66, v31"]
    if OPT['h1t'] >= 4 or OPT['rb'] & 2: V[2] = lambda x=V[2]: (a.nv("ht"), a(x))
    for i, x in enumerate(V): fat(106 + i, x)
    sK = "s2"
    T = [f"s_and_b32 {sK}, {sG}, {OPT['st2']}\n{'s_lshr_b32' if OPT['st2'] == 4 else 's_lshl_b32'} {sK}, {sK}, 1\ns_xor_b32 {sK}, {sK}, {sW}", f"s_cmp_eq_u32 {sK}, 3\ns_cselect_b32 s18, {OOB}, {k4(10)}\ns_cselect_b32 s19, {OOB}, {k4(5)}\ns_cselect_b32 s20, 10, 11",
         f"s_lshl2_add_u32 s21, {sG}, {sK}\ns_lshl1_add_u32 s21, s21, 1\ns_mul_i32 s21, s21, {XS}\ns_lshl_b32 s20, s20, 10", f"s_sub_u32 s21, s21, s20\ns_and_b32 s20, {sW}, 1\ns_lshl_b32 s20, s20, 9\ns_add_u32 s22, s21, s20",
         f"s_lshl_b32 s36, {sG}, 8\ns_add_u32 s36, s36, {HFL}\ns_lshl2_add_u32 s1, {sJ}, {sW}\ns_lshl2_add_u32 s1, s1, s36", f"s_lshl_b32 s26, {sK}, 5\ns_add_u32 s26, s26, s36\ns_lshl_b32 s24, {sG}, 13\ns_add_u32 s24, s24, {PS}",
         f"s_add_u32 s25, s24, 4096\ns_xor_b32 s0, {sTAG}, {sX}",
         f"s_mul_i32 s37, {sJ}, 43\ns_mul_i32 s38, {sK}, 11\ns_add_u32 s37, s37, s38\ns_lshl_b32 s37, s37, 12", f"s_add_u32 s37, s37, {W2T}\ns_lshr_b32 s38, {sW}, 1\ns_lshl_b32 s38, s38, 11\ns_or_b32 s37, s37, s38",
         f"s_lshl_b32 s12, {sG}, 16\ns_add_u32 s12, s12, {U}\ns_mul_i32 s13, {sG}, {HS}\ns_add_u32 s13, s13, {H1}",
         f"s_min_u32 s39, {sK}, 2\ns_mul_i32 s39, s39, {HS}\ns_add_u32 s39, s39, s12\ns_mov_b32 s14, {H1A - U}",
         f"s_cmp_eq_u32 {sK}, 2\ns_cselect_b32 s39, s13, s39\ns_cselect_b32 s15, {(H1B - H1) & 0xffffffff}, s14\ns_sub_u32 s39, s39, s21",
         f"s_lshr_b32 s16, {sJ}, 1\ns_min_u32 s38, s16, 2\ns_mul_i32 s38, s38, {HS}\ns_add_u32 s38, s38, s12",
         f"s_cmp_eq_u32 s16, 2\ns_cselect_b32 s38, s13, s38\ns_cselect_b32 s14, {(H1B - H1) & 0xffffffff}, s14\ns_or_b32 s17, {sR}, 1",
         f"s_cmp_eq_u32 s16, 3\ns_cselect_b32 s16, 10, 11\ns_mul_i32 s17, s17, {XS}\ns_lshl_b32 s16, s16, 10", "s_sub_u32 s17, s17, s16\ns_sub_u32 s38, s38, s17"]
    for i, x in enumerate(T): fat(78 + i, x)
    US = (192 if OPT["u0s"] else 216, 216)
    ul = [[f"buffer_load_dwordx4 {v(US[hf]+4*i,4)}, v{16+hf}, {WS}, {k4(i)} offen sc1" for i in range(8)] for hf in range(2)]
    if OPT["u0s"]:
        assert 0, "the u loads need the barrier behind the flag poll"
        assert OPT["u0s"] >= 118 and OPT["u0s"] > OPT["mpp"] and OPT["nw2p"] <= 28
        for i, l in enumerate(ul[0]): fat(min(144, OPT["u0s"] + OPT["u0d"] * i), (l, "u0"))
    for i, m in enumerate(mf):
        for t in m[1]: a.nl(t)
        a(m[0]); run(fl.get(i, []))
    run(fl.get(144, []))
    a("s_waitcnt lgkmcnt(0)\ns_barrier")
    stamp("conv")
    rd, F = fin(1)
    run(rd)
    CS, TT, A1, B1, XR, RC, MT, PSR, TM = 36, 48, (60, 60), (84, 92, 248), 100, 20, 116, 124, 140
    a(f"ds_read_b128 {v(TM,4)}, v35\nds_read_b32 v11, v11", "ctab")
    if not OPT["u0s"]:
        for l in ul[0]: a(l, "u0")
    a("v_add_u32 v5, s37, v3\nv_xor_b32 v4, 0x800, v5")
    if OPT['oob'] & 2: a("v_mov_b32 v4, s34\nv_mov_b32 v5, s34")
    run(F)
    if stop == 3: return finish_kernel()
    def rdM(ks): return (f"ds_read2_b64 {v(MT+4*(ks&1),4)}, v34 offset0:{8*ks} offset1:{8*ks+4}", f"mt{ks}")
    a(*rdM(0))
    a("v_and_b32 v32, 1, v1\nv_lshlrev_b32 v32, 7, v32\nv_and_b32 v33, 2, v1\nv_lshl_add_u32 v33, v33, 11, v32\ns_mov_b64 exec, 15")
    a(f"buffer_load_dword v33, v33, {WS}, s23 offen sc1\nbuffer_load_dword v32, v32, {WS}, s36 offen sc1", "tch")
    a("s_mov_b64 exec, -1")
    ht = (f"buffer_load_dword v2, v2, {WS}, s38 offen", "ht")
    if OPT["w2u"]: assert NW == 48; run(touch(W2T, 8))
    w1q = w1loads[NW:]
    def W2fr(s_, b, e):
        f = 22 * b + 2 * s_ + e
        return ar(4 * f, 4) if f < 16 else v(144 + 4 * (f - 16), 4)
    w2q = [(f"buffer_load_dwordx4 {W2fr(s_,b,e)}, v{4+b}, {WS}, {'s18' if s_ == 10 else k4(s_)} offen offset:{1024*e} {FLG[OPT['w2f']]}", f"w2_{b}_{s_}") for b in range(2) for s_ in range(11) for e in range(2)]
    def cst(ks):
        return [dict(m=f"v_mfma_f32_16x16x32_bf16 {v(TT+4*t,4)}, {W1fr(ks,t)}, {v(MT+4*(ks&1),4)}, {0 if ks == 0 else v(TT+4*t,4)}",
                     nl=[f"mt{ks}"], nv=[f"w1_{ks}"], post=[rdM(ks + 1)] if t == 0 and ks < 15 else []) for t in range(3)]
    def mstream(M, loads, fills, pace):
        last = -99
        cnt = lambda: sum(1 for x in a.L if not x.label)
        def owed(m):
            n = any(t in a.lq and len(a.lq) - a._cnt(a.lq, t) > a.ldone for t in m.get("nl", []))
            return n + any(t in a.vq and len(a.vq) - a._cnt(a.vq, t) > a.vdone for t in m.get("nv", []))
        for i, m in enumerate(M):
            for t in m.get("nv", []):
                while t not in a.vq or any(l[1][1] == t for l in loads): run([loads.pop(0)[1]]); last = i
            for t in sorted(m.get("nv", []), key=lambda t: a._cnt(a.vq, t)): a.nv(t)
            for t in sorted(m.get("nl", []), key=lambda t: a._cnt(a.lq, t)): a.nl(t)
            a(m["m"]); end = cnt() + OPT["gap"] - (owed(M[i + 1]) if i + 1 < len(M) else 0)
            run(m.get("post", []))
            if loads and loads[0][0] <= i and (i - last > pace or (i - last == pace and cnt() < end)): run([loads.pop(0)[1]]); last = max(last + pace, i - 1)
            while fills and fills[0][0] <= i and cnt() < end: run([fills.pop(0)[1]])
    def vstream(items, loads, every):
        for i, x in enumerate(items):
            run([x])
            if loads and i % every == every - 1: run([loads.pop(0)[1]])
    at0 = lambda L, p=0: [(p, x) for x in L]
    V = [f"v_lshlrev_b32 v{RC+2*i}, 16, v{TM+i}\nv_and_b32 v{RC+2*i+1}, 0xffff0000, v{TM+i}\nv_rcp_f32 v{RC+2*i}, v{RC+2*i}\nv_rcp_f32 v{RC+2*i+1}, v{RC+2*i+1}" for i in range(4)]
    V = [lambda: a.nl("ctab"), ("v_cmp_ne_u32 vcc, s0, v11\ns_mov_b32 s63, vcc_lo" if OPT["loc"] else "s_mov_b32 s63, 1") + f"\ns_cmp_eq_u32 s63, 0\ns_cselect_b32 s20, {XT}, {k4(0)}\ns_cselect_b32 s14, 0, s14\ns_cselect_b32 s15, 0, s15\ns_max_u32 s20, s20, {H}", "s_add_u32 s21, s38, s14\ns_add_u32 s39, s39, s15"] + V
    V += [f"v_add_u32 v17, {k4(8)}, v16\nv_and_b32 v19, 0xf0, v3",
          "s_add_u32 s22, s22, s20\nv_and_b32 v7, 32, v1\nv_lshl_add_u32 v7, v7, 4, v3\nv_add_u32 v7, s22, v7\nv_xor_b32 v6, 0x200, v7\ns_sub_u32 s22, s39, s20"]
    if OPT['oob'] & 4: V.append("v_mov_b32 v6, s34\nv_mov_b32 v7, s34")
    NCS = min((NW + (OPT["nwp"] if OPT["nw2p"] else 0)) // 3, OPT["ncp"])
    N2 = OPT["nw2p"]; assert N2 == 0 or len(w1q) <= OPT["nwp"]
    L = at0(w1q[:OPT["nwp"]] + w2q[:N2] + ([ht] if OPT["h1t"] == 3 else [])); w1q = w1q[OPT["nwp"]:]; V = at0(V)
    mstream([m for ks in range(NCS) for m in cst(ks)], L, V, OPT["pacep"])
    run([x[1] for x in V + L])
    def rdU(hf, ks): return [(f"ds_read_b64_tr_b16 {v(B1[(ks+hf)%3]+4*rt+2*e,2)}, v{28+rt} offset:{32768*hf+2048*ks+1024*e}", f"U{hf}_{ks}") for rt in range(2) for e in range(2)]
    def ustage(hf):
        return [lambda: poll(ul[hf], sent([US[hf] + 4 * i for i in range(8)], 11), f"u{hf}")] + [(f"ds_write_b128 v18, {v(US[hf]+4*i,4)} offset:{32768*hf + 4096*i}", f"uw{hf}") for i in range(8)]
    def uopen(hf):
        a.nl(f"uw{hf}"); a("s_barrier"); stamp(f"u{hf}arr")
        run(rdU(hf, 0))
        for e in range(2): a(f"ds_read_b64_tr_b16 {v(TM+2*e,2)}, v30 offset:{32768*hf + 256*e}", f"xres{hf}")
        run(rdU(hf, 1))
    def pstat(hf):
        x = XR + 8 * hf; p_, q_ = TM, TM + 1
        S = [lambda: a.nl(f"xres{hf}")]
        for i in range(4): S += [f"v_lshlrev_b32 v{x+2*i}, 16, v{TM+i}", f"v_and_b32 v{x+2*i+1}, 0xffff0000, v{TM+i}"]
        S += [f"v_mul_f32 v{x+i}, v{x+i}, v{RC+i}" for i in range(8)]
        S += [f"v_add_f32 v{p_}, v{x}, v{x+1}", f"v_mul_f32 v{q_}, v{x}, v{x}", f"v_fmac_f32 v{q_}, v{x+1}, v{x+1}"]
        for i in range(2, 8): S += [f"v_add_f32 v{p_}, v{p_}, v{x+i}", f"v_fmac_f32 v{q_}, v{x+i}, v{x+i}"]
        S += [f"v_permlane32_swap_b32 v{p_}, v{q_}", f"v_add_f32 v{p_}, v{p_}, v{q_}", f"v_mov_b32 v{q_}, v{p_}", f"v_permlane16_swap_b32 v{p_}, v{q_}", f"v_add_f32 v{p_}, v{p_}, v{q_}", f"v_mov_b32 v{q_}, v{p_}", f"v_permlane32_swap_b32 v{p_}, v{q_}"]
        def st():
            a("s_mov_b64 exec, 0xffff")
            dstore(f"buffer_store_dwordx2 {v(TM,2)}, v19, {WS}, s23 offen", f"pst{hf}")
            a(f"s_mov_b64 exec, -1\ns_add_u32 s23, s23, 4096")
        return S + [st]
    psl = [[f"buffer_load_dwordx4 {v(PSR+4*i,4)}, v3, {WS}, {'s25' if hf else 's24'} offen offset:{1024*i} sc1" for i in range(4)] for hf in range(2)]
    def Hfr(hf, s_, aa, n=4): return ar(64 + 96 * hf + 44 * aa + 4 * s_, n)
    hl = [[(f"buffer_load_dwordx4 {Hfr(hf,s_,aa)}, v{6+aa}, {WS}, {'s19' if s_ == 10 else k4(s_>>1)} offen offset:{2048*(s_&1)} sc1", f"h{hf}_{aa}_{s_}") for aa in range(2) for s_ in range(11)] for hf in range(2)]
    def gemm1(hf):
        M = []
        for ks in range(16):
            if hf == 0 and ks >= NCS: M += cst(ks)
            for rt in range(2):
                for t in range(3):
                    d = v(A1[hf] + 8 * t + 4 * rt, 4)
                    i = 3 * rt + t
                    M.append(dict(m=f"v_mfma_f32_16x16x32_bf16 {d}, {W1fr(ks,t)}, {v(B1[(ks+hf)%3]+4*rt,4)}, {0 if ks == 0 else d}", nl=[f"U{hf}_{ks}"], post=[rdU(hf, ks + 2)[i]] if i < 4 and ks < 14 else []))
        return M
    def epi1(hf):
        P = PSR; A = A1[hf]; m_, r_ = P, P + 1
        E = [lambda: poll(psl[hf], sent([PSR + 2 * i for i in range(8)], 11), f"ps{hf}"), lambda: stamp(f"ps{hf}arr")]
        E += [f"v_add_f32 v{P+i}, v{P+i}, v{P+i+m}" for m in (8, 4) for i in range(m)]
        E += (f"v_permlane32_swap_b32 v{P}, v{P+2}\nv_permlane32_swap_b32 v{P+1}, v{P+3}\nv_add_f32 v{P}, v{P}, v{P+2}\nv_add_f32 v{P+1}, v{P+1}, v{P+3}\n"
              f"v_permlane16_swap_b32 v{P}, v{P+1}\nv_add_f32 v{P}, v{P}, v{P+1}\nv_mul_f32 v{P}, 0x3b000000, v{P}\nv_mov_b32 v{P+1}, v{P}\nv_permlane16_swap_b32 v{P}, v{P+1}\n"
              f"v_fma_f32 v{r_}, -v{m_}, v{m_}, v{r_}\nv_max_f32 v{r_}, 0, v{r_}\n"
              f"v_cvt_pk_bf16_f32 v{r_}, v{r_}, v{m_}\nv_and_b32 v{m_}, 0xffff0000, v{r_}\nv_and_b32 v{P+2}, 0xffff0000, v{r_}\nv_lshlrev_b32 v{r_}, 16, v{r_}\nv_add_f32 v{r_}, 0x3727c5ac, v{r_}\n"
              f"v_cvt_pk_bf16_f32 v{r_}, v{r_}, v{r_}\nv_permlane32_swap_b32 v{m_}, v{P+2}\nv_lshlrev_b32 v{r_}, 16, v{r_}\nv_sqrt_f32 v{r_}, v{r_}\n"
              f"v_cvt_pk_bf16_f32 v{r_}, v{r_}, v{r_}\nv_lshlrev_b32 v{r_}, 16, v{r_}\nv_rcp_f32 v{P+3}, v{r_}\nv_rcp_f32 v{r_}, v{r_}\nv_permlane32_swap_b32 v{r_}, v{P+3}").split("\n")
        E1 = [f"v_pk_fma_f32 {v(A+8*t+4*rt+2*q,2)}, {v(CS+4*t+2*q,2)}, {v(P+2*rt,2)}, {v(A+8*t+4*rt+2*q,2)} op_sel:[0,0,0] op_sel_hi:[1,0,1] neg_lo:[0,1,0] neg_hi:[0,1,0]" for t in range(3) for rt in range(2) for q in range(2)]
        G = E1[:4]; E1 = E1[4:]
        for t in range(3):
            o = P + 4 + 4 * t
            G += [f"v_pk_fma_f32 {v(A+8*t+4*rt+2*q,2)}, {v(A+8*t+4*rt+2*q,2)}, {v(P+2*rt,2)}, {v(TT+4*t+2*q,2)} op_sel:[0,1,0] op_sel_hi:[1,1,1]" for rt in range(2) for q in range(2)]
            G += [f"v_cvt_pk_bf16_f32 v{o+i}, v{A+8*t+2*i}, v{A+8*t+2*i+1}" for i in range(4)]
            G += [f"v_pk_max_i16 v{o+i}, v{o+i}, 0" for i in (0, 2, 1, 3)] + E1[:2]
            G += [f"v_permlane32_swap_b32 v{o}, v{o+2}", f"v_permlane32_swap_b32 v{o+1}, v{o+3}"]
            G += [lambda o=o, t=t: dstore(f"buffer_store_dwordx4 {v(o,4)}, v{12+t}, {WS}, s{20+hf} offen", f"hst{hf}")] + E1[2:4]; E1 = E1[4:]
        return E, G + [lambda: stamp(f"h{hf}pub")]
    def hflag(hf):
        a.nv(f"hst{hf}"); a("s_mov_b64 exec, 1")
        dstore(f"buffer_store_dword v15, v31, {WS}, s1 offen offset:{128*hf}", f"hf{hf}")
        a("s_mov_b64 exec, -1"); stamp(f"f{hf}pub")
    fll = [f"buffer_load_dword v23, v31, {WS}, s26 offen offset:{128*hf} sc1" for hf in range(2)]
    def hcheck(hf): poll([fll[hf]], [f"v_cmp_ne_u32 vcc, {sTAG}, v23"], f"fl{hf}"); stamp(f"f{hf}arr")
    split = [x for i in range(12) for x in (f"v_mov_b32_dpp v{CS+i}, v{TT+i} quad_perm:[0,0,2,2] row_mask:0xf bank_mask:0xf", f"v_mov_b32_dpp v{TT+i}, v{TT+i} quad_perm:[1,1,3,3] row_mask:0xf bank_mask:0xf")]
    A2, R2, GB = 32, 64, 116
    S2 = [(f"ds_read_b128 {v(TM,4)}, v35 offset:2048", "gtab")]
    S2 += [f"s_xor_b32 s66, {sW}, {[3,1,2][sg]}\ns_mul_i32 s66, s66, 6144\ns_add_u32 s66, s66, {L_R2 + 2048*sg}\nv_add_u32 v{8+sg}, s66, v3" for sg in range(3)]
    S2 += [f"s_mul_i32 s66, {sW}, 6144\ns_add_u32 s66, s66, {L_R2}\nv_add_u32 v16, s66, v3",
           f"s_lshr_b32 s66, {sG}, 3\ns_and_b32 s67, {sG}, 1\ns_lshl1_add_u32 s66, s66, s67\ns_and_b32 s67, {sW}, 1", f"s_lshl1_add_u32 s66, s66, s67\ns_bfe_u32 s67, {sG}, 0x20001\ns_lshl4_add_u32 s66, s66, s67\ns_lshl_b32 s66, s66, 12",
           f"s_lshr_b32 s67, {sW}, 1\ns_lshl1_add_u32 s67, {sJ}, s67\ns_lshl_b32 s67, s67, 6\ns_add_u32 s66, s66, s67"]
    S2 += "v_and_b32 v2, 12, v1\nv_lshlrev_b32 v2, 12, v2\nv_and_b32 v11, 3, v1\nv_lshl_add_u32 v2, v11, 10, v2\nv_and_b32 v11, 48, v1\nv_add3_u32 v2, v2, v11, s66".split("\n")
    S2 += [lambda: a.nl("gtab")] + [x for i in range(4) for x in (f"v_lshlrev_b32 v{GB+2*i}, 16, v{TM+i}", f"v_and_b32 v{GB+2*i+1}, 0xffff0000, v{TM+i}")]
    if OPT["spl"] and NCS == 16: run(split); split = []
    if OPT["s2e"]:
        assert NW == 48; run(S2[:4] + S2[5:]); S2 = S2[4:5]
    run(ustage(0)); uopen(0)
    P0_ = pstat(0)
    if OPT["psa"] & 1: run(P0_); P0_ = []
    M = gemm1(0); n = len(M)
    k0 = min(OPT['w2a'], N2 + max(0, OPT["u1s"] // OPT["pace"] - len(w1q)))
    L = at0(w1q + w2q[N2:k0]) + at0([(l, "u1") for l in ul[1]], OPT["u1s"])
    if OPT["h1t"] == 1: L.append((0, ht))
    k = min(OPT['w2a'], k0 + max(0, (n - 96 + OPT["ps0s"]) // OPT["pace"] - max(len(L), OPT["w2s"] // OPT["pace"])))
    L += at0(w2q[k0:k], OPT["w2s"]) + at0([(l, "ps0") for l in psl[0]], n - 96 + OPT["ps0s"]) + at0(w2q[k:34], OPT['w2r'])
    def flush(tag):
        while any(l[1][1] == tag for l in L): run([L.pop(0)[1]])
    E0, G0 = epi1(0)
    V = at0(P0_) + (at0(split) if NCS == 16 else []) + at0([lambda: flush("u1")] + ustage(1), n - 96 + OPT["u1p"])
    E0 = [lambda: flush("ps0")] + E0
    if OPT["e0a"]: V += at0(E0); E0 = []
    mstream(M, L, V, OPT["pace"])
    stamp("g1a")
    vstream([x[1] for x in V] + [lambda: uopen(1)] + merge([[] if NCS == 16 else split, E0]) + (pstat(1) if OPT["psb"] == 1 else []) + G0 + (pstat(1) if OPT["psb"] == 2 else []), L, OPT["ev0"])
    L = at0([x[1] for x in L] + w2q[34:42])
    def push(items):
        L[0:0] = at0(items)
    E1_, G1_ = epi1(1)
    V = at0([] if OPT["psb"] else pstat(1)) + sorted([(OPT["f0s"], lambda: hflag(0)), (OPT["ps1p"], lambda: push([(l, "ps1") for l in psl[1]])), (OPT["p0s"], (fll[0], "fl0")), (OPT["c0s"], lambda: (hcheck(0), L.extend(at0(hl[0][:11]))))]
                               + at0([lambda: flush("ps1")] + E1_, OPT["e1s"]), key=lambda x: x[0])
    assert OPT["c0s"] >= 48
    mstream(gemm1(1), L, V, OPT["pace1b"])
    stamp("g1b")
    run([x[1] for x in V])
    L += at0(w2q[42:] + hl[0][11:])
    vstream(G1_ + S2, L, OPT["ev1"])
    if stop == 4: return finish_kernel()
    for hf in range(2):
        M = []
        for sg in range(4):
            aa, b = sg >> 1, sg & 1
            for s_ in range(11):
                for e in range(2):
                    d = v(A2 + 8 * sg + 4 * e, 4); k = 2 * s_ + e; post = []
                    if OPT["ro"] and sg == 2 and k in (1, 2): post.append((f"ds_write_b128 v8, {v(A2+4*(k-1),4)} offset:{24576*hf + 1024*(k-1)}", "r2w"))
                    if sg > OPT["ro"] and k in (3, 4): post.append((f"ds_write_b128 v{8+sg-1}, {v(A2+8*(sg-1)+4*(k-3),4)} offset:{24576*hf + 1024*(k-3)}", "r2w"))
                    if sg == 3 and k == 8: post.append("s_waitcnt lgkmcnt(0)\ns_barrier")
                    if sg == 3 and 8 <= k < 14: post.append((f"ds_read_b128 {v(R2+4*(k-8),4)}, v16 offset:{24576*hf + 1024*(k-8)}", "r2"))
                    if sg == 3 and k == 17: post.append(lambda: a.wl("r2"))
                    if sg == 3 and k >= 17: post += [f"v_add_f32 v{R2+i}, v{R2+i}, v{R2+8+i}\nv_add_f32 v{R2+i}, v{R2+i}, v{R2+16+i}" for i in ([0, 1], [2, 3], [4, 5], [6], [7])[k - 17]]
                    if sg + k == 0: post.append(lambda hf=hf: stamp(f"h{hf}arr"))
                    M.append(dict(m=f"v_mfma_f32_16x16x32_bf16 {d}, {W2fr(s_,b,e)}, {Hfr(hf,s_,aa)}, {0 if s_ == 0 else d}", nv=[f"w2_{b}_{s_}", f"h{hf}_{aa}_{s_}"], post=post))
        if OPT["ro"]: M[:44] = [M[22 * b + 2 * s_ + e] for s_ in range(11) for b in range(2) for e in range(2)]
        def wb(i=0):
            a(f"s_lshl2_add_u32 s66, {sI}, {sW}\ns_cmp_eq_u32 s66, {4*i}\ns_cbranch_scc1 L_wb{i}\nbuffer_load_dword v{22+(i>0)}, v31, {WS}, s34 offen\nL_wbd{i}:")
            tail2.append((f"L_wb{i}", f"L_wbd{i}", "buffer_wbl2"))
        ost = f"global_store_dwordx4 v2, {v(TM,4)}, s[28:29] " + ("nt", "sc1", "sc0 sc1", "sc1 nt", "sc0 sc1 nt", "")[OPT["ost"]]
        V = sorted(([(OPT["wbs"], wb)] if OPT["wb"] == 2 else []) + ([(OPT["oss"], ost + "\nv_add_u32 v2, s69, v2")] if OPT["oss"] >= 0 else []), key=lambda x: x[0])
        if hf == 0:
            V = [(OPT["f1n"], lambda: hflag(1)), (OPT["p1n"], lambda: (flush("h0_1_10"), a(fll[1], "fl1"), a("v_add_u32 v6, s22, v6\nv_add_u32 v7, s22, v7"))), (OPT["h1n"], lambda: (hcheck(1), OPT["wb"] >= 3 and wb(16), L.extend(at0(hl[1]))))]
        mstream(M, L, V, OPT["pace3" if hf else "pace2"]); assert not V
        if hf == 0 and OPT["wb"] in (1, 4): wb()
        stamp("g2a" if hf == 0 else "g2b")
        x = XR + 8 * hf
        for i in range(4): a(f"v_pk_fma_f32 {v(x+2*i,2)}, {v(R2+2*i,2)}, {v(GB+2*i,2)}, {v(x+2*i,2)}")
        for i in range(4): a(f"v_pk_fma_f32 {v(x+2*i,2)}, {v(A2+24+2*i,2)}, {v(GB+2*i,2)}, {v(x+2*i,2)}")
        for i in range(4): a(f"v_cvt_pk_bf16_f32 v{TM+i}, v{x+2*i}, v{x+2*i+1}")
        if hf or OPT["oss"] < 0: a(ost + ("" if hf else "\nv_add_u32 v2, s69, v2"))
    return finish_kernel()

if __name__ == "__main__":
    stop = int(sys.argv[1]) if len(sys.argv) > 1 else 99
    stamps = int(sys.argv[2]) if len(sys.argv) > 2 else 0
    out = sys.argv[3] if len(sys.argv) > 3 else "k.s"
    probe = sys.argv[4] if len(sys.argv) > 4 else None
    open(out, "w").write(gen(stop, stamps, probe=probe))
```
